```python
import torch

def _softmax(x, axis=-1):
    return torch.softmax(x, dim=axis)
def _gelu(x):
    return torch.nn.functional.gelu(x, approximate="tanh")
def _silu(x):
    return torch.nn.functional.silu(x)
def _sigmoid(x):
    return torch.sigmoid(x)
def _layernorm(x, axis=-1, eps=1e-5):
    m = x.mean(dim=axis, keepdim=True)
    v = x.var(dim=axis, keepdim=True, unbiased=False)
    return (x - m) / torch.sqrt(v + eps)
def _scatter_add(tgt, idx, src, axis=0):
    return tgt.clone().index_add_(axis, idx, src)
def _segment_sum(src, seg, n):
    out = torch.zeros((n,) + src.shape[1:], dtype=src.dtype)
    return out.index_add_(0, seg, src)
def _pad(x, pw):
    flat = tuple(v for pair in reversed(pw) for v in pair)
    return torch.nn.functional.pad(x, flat)

kernel_name = 'gated_mix__spectral_gfnet__swiglu_ffn__prompt'

def setup_inputs():

    _w = (lambda a: (lambda t: t.to(torch.bfloat16) if t.is_floating_point() else t)(torch.as_tensor(a)))
    def _A_setup():
        B, S, D = 1, 2048, 512
        Df = D // 2 + 1
        return {
            "x": _w((lambda *s: torch.randn(*s, dtype=torch.bfloat16) * 0.05)(B, S, D)),
            "w_r": _w((lambda *s: torch.randn(*s, dtype=torch.bfloat16) * 0.8)(S, Df) * 0.02),
            "w_i": _w((lambda *s: torch.randn(*s, dtype=torch.bfloat16) * 0.8)(S, Df) * 0.02),
        }
    _A_in = _A_setup()

    def _B_setup():
        B, S, D, F = 1, 2048, 512, 1376
        return {
            "x": _w((lambda *s: torch.randn(*s, dtype=torch.bfloat16) * 0.05)(B, S, D)),
            "w_gate": _w((lambda *s: torch.randn(*s, dtype=torch.bfloat16) * 0.05)(D, F)),
            "w_up": _w((lambda *s: torch.randn(*s, dtype=torch.bfloat16) * 0.05)(D, F)),
            "w_down": _w((lambda *s: torch.randn(*s, dtype=torch.bfloat16) * 0.05)(F, D)),
        }
    _B_in = _B_setup()

    return {
        "A_x": _A_in["x"],
        "A_w_r": _A_in["w_r"],
        "A_w_i": _A_in["w_i"],
        "B_x": _B_in["x"],
        "B_w_gate": _B_in["w_gate"],
        "B_w_up": _B_in["w_up"],
        "B_w_down": _B_in["w_down"],
        "gate_w": _w((lambda *s: torch.randn(*s, dtype=torch.bfloat16) * 0.05)(512) * 16.0),
    }

def reference(A_x, A_w_r, A_w_i, B_x, B_w_gate, B_w_up, B_w_down, gate_w):
    def _A_ref(x, w_r, w_i):
        B, S, D = x.shape
        X = (lambda x, axes=(-2,-1): torch.fft.rfft2(x.float(), dim=axes))(x, axes=(-2, -1))
        W = w_r + 1j * w_i
        X = X * W
        y = (lambda x, s, axes=(-2,-1): torch.fft.irfft2(x, s=s, dim=axes).to(torch.bfloat16))(X, (S, D), axes=(-2, -1))
        return y

    def _B_ref(x, w_gate, w_up, w_down):
        g = _silu(x @ w_gate)
        u = x @ w_up
        return (g * u) @ w_down

    x = A_x
    g = _sigmoid((x * gate_w).sum(-1, keepdims=True))
    a = _A_ref(x, A_w_r, A_w_i)
    b = _B_ref(x, B_w_gate, B_w_up, B_w_down)
    return g * a + (1 - g) * b
```

```python
import re

TRANS = ("v_sin_f32", "v_cos_f32", "v_exp_f32", "v_log_f32", "v_rcp_f32", "v_rsq_f32", "v_sqrt_f32")
_REG = re.compile(r"^(?:-|abs\()*(v|s|a)(?:\[(\d+):(\d+)\]|(\d+))\)?$")


def regs_of(tok):
    tok = tok.strip()
    if tok in ("vcc",):
        return [("s", 106), ("s", 107)]
    if tok == "exec":
        return [("s", 126), ("s", 127)]
    if tok == "m0":
        return [("s", 124)]
    m = _REG.match(tok)
    if not m:
        return []
    k = m.group(1)
    if m.group(2) is not None:
        return [(k, i) for i in range(int(m.group(2)), int(m.group(3)) + 1)]
    return [(k, int(m.group(4)))]


def parse(line):
    s = line.split(";")[0].strip()
    if not s or s.endswith(":") or s.startswith("."):
        return None
    parts = s.split(None, 1)
    mn = parts[0]
    rest = parts[1] if len(parts) > 1 else ""
    ops = [o.strip() for o in rest.split(",")] if rest else []
    mods = ""
    if ops:
        joined = []
        depth = 0
        cur = ""
        for ch in rest:
            if ch == "[":
                depth += 1
            if ch == "]":
                depth -= 1
            if ch == "," and depth == 0:
                joined.append(cur.strip())
                cur = ""
            else:
                cur += ch
        joined.append(cur.strip())
        ops = joined
        last = ops[-1].split(None, 1)
        ops[-1] = last[0]
        mods = last[1] if len(last) > 1 else ""
    R = [regs_of(o) for o in ops]
    flat = lambda L: [r for x in L for r in x]
    dst, src = [], []
    if mn.startswith("v_mfma"):
        dst, src = R[0], flat(R[1:])
    elif mn.startswith("v_cmp"):
        dst, src = R[0], flat(R[1:])
    elif mn in ("v_add_co_u32", "v_sub_co_u32", "v_subrev_co_u32"):
        dst, src = R[0] + R[1], flat(R[2:])
    elif mn in ("v_addc_co_u32", "v_subb_co_u32"):
        dst, src = R[0] + R[1], flat(R[2:])
    elif mn.startswith("v_"):
        dst, src = R[0], flat(R[1:])
        if "fmac" in mn:
            src = src + R[0]
    elif mn.startswith("ds_read") or mn.startswith("ds_bpermute") or mn.startswith("ds_swizzle"):
        dst, src = R[0], flat(R[1:])
    elif mn.startswith("ds_write"):
        src = flat(R)
    elif mn.startswith("buffer_load") or mn.startswith("global_load"):
        if "_lds_" in mn or re.search(r"\blds\b", mods):
            src = flat(R) + [("s", 124)]
        else:
            dst, src = R[0], flat(R[1:])
    elif mn.startswith("buffer_store") or mn.startswith("global_store"):
        src = flat(R)
    elif mn.startswith("s_"):
        if mn.startswith("s_cmp") or mn in ("s_waitcnt", "s_barrier", "s_nop", "s_endpgm", "s_branch", "s_setprio") or mn.startswith("s_cbranch"):
            src = flat(R)
        else:
            dst, src = (R[0] if R else []), flat(R[1:])
            if "saveexec" in mn:
                dst = dst + [("s", 126), ("s", 127)]
    return mn, dst, src, mods


def mfma_passes(mn):
    if "32x32x16" in mn or "32x32x8" in mn:
        return 8
    return 4


def fix_hazards(lines):
    out = []
    pos = 0
    lastw = {}
    mfma_c_read = {}
    store_data = {}
    for line in lines:
        p = parse(line)
        if p is None:
            out.append(line)
            continue
        mn, dst, src, mods = p
        if mn == "s_nop":
            n = int(line.split()[1], 0)
            out.append(line)
            pos += n + 1
            continue
        is_mfma = mn.startswith("v_mfma")
        is_valu = mn.startswith("v_") and not is_mfma
        is_trans = mn in TRANS
        is_dpp = "_dpp" in mn or "row_" in mods
        is_vmem = mn.startswith("buffer_") or mn.startswith("global_")
        is_ds = mn.startswith("ds_")
        is_salu = mn.startswith("s_")
        is_lane = mn in ("v_readlane_b32", "v_readfirstlane_b32")
        need = 0

        def req(prodpos, ws):
            nonlocal need
            gap = pos - prodpos - 1
            if gap < ws:
                need = max(need, ws - gap)

        for r in src:
            if r not in lastw:
                continue
            q, kind = lastw[r]
            if r[0] == "v" or r[0] == "a":
                if kind == "trans" and (is_valu and not is_trans):
                    req(q, 1)
                if kind in ("valu", "trans"):
                    if is_mfma:
                        req(q, 2)
                    if is_dpp:
                        req(q, 2)
                    if is_lane:
                        req(q, 1)
                if kind in ("mfma4", "mfma8"):
                    n8 = kind == "mfma8"
                    if is_mfma:
                        ops_c = regs_of([o for o in _ops(line)][3]) if len(_ops(line)) > 3 else []
                        if r in ops_c and ops_c == dst and lastw_tuple.get(r) == tuple(ops_c):
                            pass
                        elif r in ops_c:
                            req(q, 10 if n8 else 6)
                        else:
                            req(q, 12 if n8 else 8)
                    else:
                        req(q, 12 if n8 else 8)
            else:
                if kind in ("valu", "trans"):
                    if is_valu or is_mfma:
                        req(q, 4 if is_lane else 2)
                    elif is_vmem:
                        req(q, 5)
                    else:
                        req(q, 1)
                if kind == "salu" and r == ("s", 124) and is_vmem:
                    req(q, 1)
        for r in dst:
            if r in lastw and lastw[r][1] in ("mfma4", "mfma8") and not is_mfma:
                req(lastw[r][0], 12 if lastw[r][1] == "mfma8" else 8)
            if r in mfma_c_read and is_valu:
                q, ps = mfma_c_read[r]
                req(q, 7 if ps == 8 else 3)
            if r in store_data:
                req(store_data[r], 2)
        if need:
            k = need
            while k > 0:
                n = min(k, 16)
                out.append(f"    s_nop {n-1}")
                pos += n
                k -= n
        out.append(line)
        if is_mfma:
            ps = mfma_passes(mn)
            for r in dst:
                lastw[r] = (pos, "mfma8" if ps == 8 else "mfma4")
                lastw_tuple[r] = tuple(dst)
            o = _ops(line)
            if len(o) > 3:
                for r in regs_of(o[3]):
                    mfma_c_read[r] = (pos, ps)
        elif is_valu:
            for r in dst:
                lastw[r] = (pos, "trans" if is_trans else "valu")
        elif is_salu:
            for r in dst:
                lastw[r] = (pos, "salu")
        else:
            for r in dst:
                lastw[r] = (pos, "load")
        if (mn.startswith("buffer_store") or mn.startswith("global_store")) and ("x4" in mn or "x3" in mn):
            o = _ops(line)
            d = o[0] if mn.startswith("buffer") else o[1]
            for r in regs_of(d):
                store_data[r] = pos
        pos += 1
    return out


lastw_tuple = {}


def _ops(line):
    s = line.split(";")[0].strip()
    rest = s.split(None, 1)[1]
    joined, depth, cur = [], 0, ""
    for ch in rest:
        if ch == "[":
            depth += 1
        if ch == "]":
            depth -= 1
        if ch == "," and depth == 0:
            joined.append(cur.strip())
            cur = ""
        else:
            cur += ch
    joined.append(cur.strip())
    joined[-1] = joined[-1].split(None, 1)[0]
    return joined


class Kern:
    def __init__(self, name):
        self.name = name
        self.L = []

    def e(self, s):
        self.L.append("    " + s)

    def c(self, s):
        self.L.append("    ; " + s)

    def label(self, n):
        self.L.append(n + ":")


class Pool:
    def __init__(self, bases):
        self.free_ = list(bases)

    def alloc(self):
        return self.free_.pop(0)

    def free(self, b):
        assert b not in self.free_
        self.free_.append(b)


def P(b):
    return f"v[{b}:{b+1}]"


def Q(b):
    return f"v[{b}:{b+3}]"
```

```python
import sys
import asmlib
from asmlib import Kern, Pool, P, Q, fix_hazards

NAME = "gated_mix__spectral_gfnet__swiglu_ffn__prompt"
S, D, F = 2048, 512, 1376
H_OFF = 0
X1_OFF = 8 << 20
Y1_OFF = 16 << 20
WT_OFF = 24 << 20
B_OFF = 28 << 20
G_OFF = 32 << 20
H_SIZE = S * F * 2
X1_SIZE = 257 * S * 8
WT_SIZE = 257 * S * 4
B_SIZE = S * D * 2
RSQ2 = 0x3F3504F3
LOG2E = 0x3FB8AA3B
SCALE = 0x35000000


def cadd(k, d, a, b):
    k.e(f"v_pk_add_f32 {P(d)}, {P(a)}, {P(b)}")


def csub(k, d, a, b):
    k.e(f"v_pk_add_f32 {P(d)}, {P(a)}, {P(b)} neg_lo:[0,1] neg_hi:[0,1]")


def crot(k, d, a, b, sgn, nega=False):
    na = 1 if nega else 0
    if sgn < 0:
        k.e(f"v_pk_add_f32 {P(d)}, {P(a)}, {P(b)} op_sel:[0,1] op_sel_hi:[1,0] neg_lo:[{na},0] neg_hi:[{na},1]")
    else:
        k.e(f"v_pk_add_f32 {P(d)}, {P(a)}, {P(b)} op_sel:[0,1] op_sel_hi:[1,0] neg_lo:[{na},1] neg_hi:[{na},0]")


def bfly(k, pool, a, b):
    t = pool.alloc()
    csub(k, t, a, b)
    cadd(k, a, a, b)
    pool.free(b)
    return a, t


def fft4(k, pool, c, dirn):
    d0, d2 = bfly(k, pool, c[0], c[2])
    d1, e3 = bfly(k, pool, c[1], c[3])
    y0, y2 = bfly(k, pool, d0, d1)
    y1 = pool.alloc()
    crot(k, y1, d2, e3, dirn)
    crot(k, d2, d2, e3, -dirn)
    pool.free(e3)
    return [y0, y1, y2, d2]


def fft8(k, pool, a, dirn, scc):
    b0, b4 = bfly(k, pool, a[0], a[4])
    b1, b5 = bfly(k, pool, a[1], a[5])
    b2, b6 = bfly(k, pool, a[2], a[6])
    b3, b7 = bfly(k, pool, a[3], a[7])
    ye = fft4(k, pool, [b0, b1, b2, b3], dirn)
    d0 = pool.alloc()
    crot(k, d0, b4, b6, dirn)
    crot(k, b4, b4, b6, -dirn)
    d2 = b4
    pool.free(b6)
    crot(k, b5, b5, b5, dirn)
    crot(k, b7, b7, b7, dirn, nega=True)
    D1, E3 = bfly(k, pool, b5, b7)
    y0 = pool.alloc()
    k.e(f"v_pk_fma_f32 {P(y0)}, {P(D1)}, {scc}, {P(d0)}")
    k.e(f"v_pk_fma_f32 {P(d0)}, {P(D1)}, {scc}, {P(d0)} neg_lo:[1,0,0] neg_hi:[1,0,0]")
    y2 = d0
    pool.free(D1)
    y1 = pool.alloc()
    pos = "op_sel:[1,0,0] op_sel_hi:[0,1,1] neg_lo:[1,0,0]"
    neg = "op_sel:[1,0,0] op_sel_hi:[0,1,1] neg_hi:[1,0,0]"
    k.e(f"v_pk_fma_f32 {P(y1)}, {P(E3)}, {scc}, {P(d2)} {pos if dirn > 0 else neg}")
    k.e(f"v_pk_fma_f32 {P(d2)}, {P(E3)}, {scc}, {P(d2)} {neg if dirn > 0 else pos}")
    y3 = d2
    pool.free(E3)
    return [ye[0], y0, ye[1], y1, ye[2], y2, ye[3], y3]


def ctw(k, pool, a, w, conj):
    t = pool.alloc()
    if not conj:
        k.e(f"v_pk_mul_f32 {P(t)}, {P(a)}, {P(w)} op_sel:[0,0] op_sel_hi:[0,1]")
        k.e(f"v_pk_fma_f32 {P(a)}, {P(a)}, {P(w)}, {P(t)} op_sel:[1,1,0] op_sel_hi:[1,0,1] neg_lo:[0,1,0]")
    else:
        k.e(f"v_pk_mul_f32 {P(t)}, {P(a)}, {P(w)} op_sel:[0,0] op_sel_hi:[0,1] neg_hi:[0,1]")
        k.e(f"v_pk_fma_f32 {P(a)}, {P(a)}, {P(w)}, {P(t)} op_sel:[1,1,0] op_sel_hi:[1,0,1]")
    pool.free(t)


def fbits(x):
    import struct
    return "0x%08x" % struct.unpack("<I", struct.pack("<f", x))[0]


def gen_twiddles(k, vk, denom, rs, dst, tmp):
    k.e(f"v_cvt_f32_u32 v{tmp}, v{vk}")
    k.e(f"v_mul_f32 v{tmp}, {fbits(-1.0 / denom)}, v{tmp}")
    for r in rs:
        if r == 1:
            src = tmp
        else:
            k.e(f"v_mul_f32 v{tmp+1}, {fbits(float(r))}, v{tmp}")
            src = tmp + 1
        k.e(f"v_cos_f32 v{dst[r]}, v{src}")
        k.e(f"v_sin_f32 v{dst[r]+1}, v{src}")


def srd(k, d, lo, hi, size):
    k.e(f"s_mov_b32 s{d}, s{lo}")
    k.e(f"s_mov_b32 s{d+1}, s{hi}")
    k.e(f"s_mov_b32 s{d+2}, {size}")
    k.e(f"s_mov_b32 s{d+3}, 0x00020000")


def srd_off(k, d, lo, hi, off, size):
    k.e(f"s_add_u32 s{d}, s{lo}, {off}")
    k.e(f"s_addc_u32 s{d+1}, s{hi}, 0")
    k.e(f"s_mov_b32 s{d+2}, {size}")
    k.e(f"s_mov_b32 s{d+3}, 0x00020000")


def fft512_wave(k, pool, d, dirn, scc, a_w1, a_rd, a_w2, tw2, tw3):
    d = fft8(k, pool, d, dirn, scc)
    for r in range(8):
        k.e(f"ds_write_b64 v{a_w1}, {P(d[r])} offset:{8*r}")
    for r in range(8):
        k.e(f"ds_read_b64 {P(d[r])}, v{a_rd} offset:{576*r}")
    k.e("s_waitcnt lgkmcnt(0)")
    for r in range(1, 8):
        ctw(k, pool, d[r], tw2[r], dirn > 0)
    d = fft8(k, pool, d, dirn, scc)
    for r in range(8):
        k.e(f"ds_write_b64 v{a_w2}, {P(d[r])} offset:{72*r}")
    for r in range(8):
        k.e(f"ds_read_b64 {P(d[r])}, v{a_rd} offset:{576*r}")
    k.e("s_waitcnt lgkmcnt(0)")
    for r in range(1, 8):
        ctw(k, pool, d[r], tw3[r], dirn > 0)
    d = fft8(k, pool, d, dirn, scc)
    return d


WREG = 4672


def fft512_addrs(k, vlane, swave, a_w1, a_rd, a_w2, tmp):
    k.e(f"s_mul_i32 s40, s{swave}, {WREG}")
    k.e(f"v_mul_u32_u24 v{a_w1}, 72, v{vlane}")
    k.e(f"v_add_u32 v{a_w1}, s40, v{a_w1}")
    k.e(f"v_lshrrev_b32 v{tmp}, 3, v{vlane}")
    k.e(f"v_add_u32 v{a_rd}, v{tmp}, v{vlane}")
    k.e(f"v_lshlrev_b32 v{a_rd}, 3, v{a_rd}")
    k.e(f"v_add_u32 v{a_rd}, s40, v{a_rd}")
    k.e(f"v_mul_u32_u24 v{a_w2}, 576, v{tmp}")
    k.e(f"v_and_b32 v{tmp}, 7, v{vlane}")
    k.e(f"v_lshl_add_u32 v{a_w2}, v{tmp}, 3, v{a_w2}")
    k.e(f"v_add_u32 v{a_w2}, s40, v{a_w2}")


def k1_gemm(k):
    e = k.e
    k.c("---- GEMM1 role ----")
    e("s_load_dwordx2 s[4:5], s[0:1], 0")
    e("s_load_dwordx2 s[6:7], s[0:1], 32")
    e("s_load_dwordx2 s[8:9], s[0:1], 40")
    e("s_load_dwordx2 s[10:11], s[0:1], 80")
    e("s_and_b32 s20, s2, 7")
    e("s_lshr_b32 s21, s2, 3")
    e("s_and_b32 s22, s20, 1")
    e("s_lshr_b32 s23, s20, 1")
    e("s_and_b32 s24, s21, 7")
    e("s_lshr_b32 s25, s21, 3")
    e("s_lshl_b32 s22, s22, 3")
    e("s_add_u32 s22, s22, s24")
    e("s_lshl_b32 s23, s23, 2")
    e("s_add_u32 s23, s23, s25")
    e("s_cmp_ge_u32 s23, 15")
    e("s_cbranch_scc1 K1_end")
    e("s_mul_i32 s23, s23, 96")
    e("s_min_u32 s23, s23, 1280")
    e("s_lshl_b32 s22, s22, 7")
    LANE, T0, T1, T2, T3, T4 = 1, 2, 3, 4, 5, 6
    e(f"v_lshrrev_b32 v{T0}, 6, v0")
    e(f"v_and_b32 v{LANE}, 63, v0")
    e(f"v_readfirstlane_b32 s26, v{T0}")
    e("s_waitcnt lgkmcnt(0)")
    srd(k, 12, 4, 5, S * D * 2)
    srd_off(k, 16, 10, 11, H_OFF, H_SIZE)
    ACC = 64
    XB = 160
    WF = 208
    DMA = 8
    VX0, VX1 = 20, 21
    VB = 24
    VH = 28
    e("s_lshl_b32 s27, s26, 5")
    e("s_add_u32 s27, s27, s22")
    e(f"v_and_b32 v{T0}, 15, v{LANE}")
    e(f"v_add_u32 v{T1}, s27, v{T0}")
    e(f"v_lshrrev_b32 v{T2}, 4, v{LANE}")
    e(f"v_lshlrev_b32 v{VX0}, 10, v{T1}")
    e(f"v_lshl_add_u32 v{VX0}, v{T2}, 4, v{VX0}")
    e(f"v_add_u32 v{VX1}, 0x4000, v{VX0}")
    e(f"v_mul_u32_u24 v{VH}, 2752, v{T1}")
    e(f"v_lshl_add_u32 v{VH}, v{T2}, 3, v{VH}")
    e("s_lshl_b32 s28, s23, 1")
    e(f"v_add_u32 v{VH}, s28, v{VH}")

    def xload(c):
        for sp in range(2):
            for mt in range(2):
                reg = XB + (c % 3) * 16 + sp * 8 + mt * 4
                e(f"buffer_load_dwordx4 {Q(reg)}, v{VX0 + mt}, s[12:15], 0 offen offset:{(2*c+sp)*64}")

    xload(0)
    e("s_mul_i32 s29, s26, 384")
    for i in range(6):
        a = DMA + 2 * i
        e(f"v_add_u32 v{T0}, s29, v{LANE}")
        if i:
            e(f"v_add_u32 v{T0}, {64*i}, v{T0}")
        e(f"v_mul_u32_u24 v{T1}, 0xaab, v{T0}")
        e(f"v_lshrrev_b32 v{T1}, 16, v{T1}")
        e(f"v_mul_u32_u24 v{T2}, 24, v{T1}")
        e(f"v_sub_u32 v{T2}, v{T0}, v{T2}")
        e(f"v_bfe_u32 v{T3}, v{T1}, 1, 1")
        e(f"v_bfe_u32 v{T4}, v{T1}, 3, 1")
        e(f"v_lshl_or_b32 v{T3}, v{T4}, 1, v{T3}")
        e(f"v_lshrrev_b32 v{T4}, 1, v{T2}")
        e(f"v_xor_b32 v{T4}, v{T3}, v{T4}")
        e(f"v_and_b32 v{T2}, 1, v{T2}")
        e(f"v_mul_u32_u24 v{T1}, 2752, v{T1}")
        e(f"v_lshl_add_u32 v{T1}, v{T2}, 4, v{T1}")
        e(f"v_lshl_add_u32 v{T1}, v{T4}, 5, v{T1}")
        e(f"v_add_u32 v{T1}, s28, v{T1}")
        e(f"v_cmp_le_u32 vcc, 6, v{T4}")
        e(f"v_mov_b32 v{T2}, s6")
        e(f"v_mov_b32 v{T3}, s8")
        e(f"v_cndmask_b32 v{T2}, v{T2}, v{T3}, vcc")
        e(f"v_mov_b32 v{T3}, s7")
        e(f"v_mov_b32 v{T4}, s9")
        e(f"v_cndmask_b32 v{T3}, v{T3}, v{T4}, vcc")
        e(f"v_subrev_u32 v{T4}, 192, v{T1}")
        e(f"v_cndmask_b32 v{T1}, v{T1}, v{T4}, vcc")
        e(f"v_add_co_u32 v{a}, vcc, v{T2}, v{T1}")
        e(f"v_addc_co_u32 v{a+1}, vcc, 0, v{T3}, vcc")
    e("s_mul_i32 s30, s26, 6144")

    def dma(c):
        for i in range(6):
            a = DMA + 2 * i
            e(f"s_add_u32 m0, s30, {(c % 3) * 24576 + i * 1024}")
            e("s_nop 0")
            e(f"global_load_lds_dwordx4 {P(a)}, off")
            if c < 7:
                e(f"v_add_co_u32 v{a}, vcc, {64*2752}, v{a}")
                e(f"v_addc_co_u32 v{a+1}, vcc, 0, v{a+1}, vcc")

    dma(0)
    xload(1)
    dma(1)
    dma(2)
    e(f"v_lshrrev_b32 v{T0}, 4, v{LANE}")
    e(f"v_bfe_u32 v{T1}, v{LANE}, 2, 2")
    e(f"v_lshl_add_u32 v{T0}, v{T0}, 3, v{T1}")
    e(f"v_mul_u32_u24 v{T0}, 384, v{T0}")
    e(f"v_and_b32 v{T1}, 3, v{LANE}")
    e(f"v_lshl_add_u32 v{T0}, v{T1}, 3, v{T0}")
    e(f"v_bfe_u32 v{T1}, v{LANE}, 3, 2")
    for b in range(4):
        e(f"v_xor_b32 v{T2}, {b}, v{T1}")
        e(f"v_lshl_add_u32 v{VB+b}, v{T2}, 5, v{T0}")

    frags = []
    for c in range(8):
        for sp in range(2):
            for nt in range(6):
                frags.append((c, sp, nt))
                frags.append((c, sp, 6 + nt))
    LA = 4
    NS = 6
    issued = 0

    def issue(j):
        c, sp, G = frags[j]
        a, b = G >> 2, G & 3
        off = (c % 3) * 24576 + sp * 12288 + a * 128
        reg = WF + (j % NS) * 4
        e(f"ds_read_b64_tr_b16 {P(reg)}, v{VB+b} offset:{off}")
        e(f"ds_read_b64_tr_b16 {P(reg+2)}, v{VB+b} offset:{off+1536}")

    def boundary(c):
        if c == 0:
            e("s_waitcnt vmcnt(16)")
        elif c == 7:
            e("s_waitcnt vmcnt(0) lgkmcnt(0)")
        else:
            e("s_waitcnt vmcnt(6) lgkmcnt(0)")
        e("s_barrier")
        if c >= 1:
            if c + 1 <= 7:
                xload(c + 1)
            if c + 2 <= 7:
                dma(c + 2)

    n = len(frags)
    lg_out = 0
    for j in range(n):
        while issued < min(n, j + LA + 1):
            if frags[issued][1] == 0 and frags[issued][2] == 0:
                boundary(frags[issued][0])
                drained = True
            issue(issued)
            issued += 1
        e(f"s_waitcnt lgkmcnt({2*(issued-1-j)})")
        c, sp, G = frags[j]
        reg = WF + (j % NS) * 4
        for mt in range(2):
            acc = ACC + ((mt * 12) + G) * 4
            xr = XB + (c % 3) * 16 + sp * 8 + mt * 4
            cin = "0" if (c == 0 and sp == 0) else Q(acc)
            e(f"v_mfma_f32_16x16x32_bf16 {Q(acc)}, {Q(reg)}, {Q(xr)}, {cin}")
    e("s_nop 7")
    e(f"s_mov_b32 s31, {LOG2E}")
    e("s_mov_b32 s32, 0xffff0000")
    TT = 160
    for mt in range(2):
        for nt in range(6):
            g = ACC + (mt * 12 + nt) * 4
            u = ACC + (mt * 12 + 6 + nt) * 4
            t = TT + ((mt * 6 + nt) % 2) * 24
            e(f"v_cvt_pk_bf16_f32 v{t}, v{g}, v{g+1}")
            e(f"v_cvt_pk_bf16_f32 v{t+1}, v{g+2}, v{g+3}")
            e(f"v_cvt_pk_bf16_f32 v{t+2}, v{u}, v{u+1}")
            e(f"v_cvt_pk_bf16_f32 v{t+3}, v{u+2}, v{u+3}")
            for i in range(2):
                e(f"v_lshlrev_b32 v{t+4+2*i}, 16, v{t+i}")
                e(f"v_and_b32 v{t+5+2*i}, s32, v{t+i}")
                e(f"v_lshlrev_b32 v{t+8+2*i}, 16, v{t+2+i}")
                e(f"v_and_b32 v{t+9+2*i}, s32, v{t+2+i}")
            for i in range(4):
                e(f"v_mul_f32 v{t+12+i}, s31, v{t+4+i}")
            for i in range(4):
                e(f"v_exp_f32 v{t+12+i}, -v{t+12+i}")
            for i in range(4):
                e(f"v_add_f32 v{t+12+i}, 1.0, v{t+12+i}")
            for i in range(4):
                e(f"v_rcp_f32 v{t+12+i}, v{t+12+i}")
            for i in range(4):
                e(f"v_mul_f32 v{t+12+i}, v{t+4+i}, v{t+12+i}")
            e(f"v_cvt_pk_bf16_f32 v{t}, v{t+12}, v{t+13}")
            e(f"v_cvt_pk_bf16_f32 v{t+1}, v{t+14}, v{t+15}")
            for i in range(2):
                e(f"v_lshlrev_b32 v{t+4+2*i}, 16, v{t+i}")
                e(f"v_and_b32 v{t+5+2*i}, s32, v{t+i}")
            for i in range(4):
                e(f"v_mul_f32 v{t+4+i}, v{t+4+i}, v{t+8+i}")
            e(f"v_cvt_pk_bf16_f32 v{t+16}, v{t+4}, v{t+5}")
            e(f"v_cvt_pk_bf16_f32 v{t+17}, v{t+6}, v{t+7}")
            if mt == 1 and nt == 0:
                e(f"v_add_u32 v{VH}, {16*2752}, v{VH}")
            e(f"buffer_store_dwordx2 {P(t+16)}, v{VH}, s[16:19], 0 offen offset:{nt*32}")
    e("s_endpgm")


def k1_fft(k):
    e = k.e
    k.c("---- row FFT role ----")
    e("s_load_dwordx2 s[4:5], s[0:1], 0")
    e("s_load_dwordx2 s[6:7], s[0:1], 8")
    e("s_load_dwordx2 s[8:9], s[0:1], 16")
    e("s_load_dwordx2 s[10:11], s[0:1], 80")
    e("s_load_dwordx2 s[34:35], s[0:1], 56")
    e("s_sub_u32 s20, s2, 256")
    e("s_lshl_b32 s20, s20, 3")
    LANE, T0, T1, T2 = 1, 2, 3, 4
    A_W1, A_RD, A_W2 = 5, 6, 7
    VOFF, VOFG = 8, 9
    e(f"v_lshrrev_b32 v{T0}, 6, v0")
    e(f"v_and_b32 v{LANE}, 63, v0")
    e(f"v_readfirstlane_b32 s26, v{T0}")
    e("s_waitcnt lgkmcnt(0)")
    srd(k, 12, 4, 5, S * D * 2)
    srd(k, 16, 34, 35, D * 2)
    srd(k, 44, 6, 7, S * 257 * 2)
    srd(k, 48, 8, 9, S * 257 * 2)
    srd_off(k, 52, 10, 11, X1_OFF, X1_SIZE)
    srd_off(k, 56, 10, 11, WT_OFF, WT_SIZE)
    srd_off(k, 60, 10, 11, G_OFF, S * 4)
    e(f"s_mov_b32 s36, {RSQ2}")
    e(f"s_mov_b32 s37, {RSQ2}")
    e("s_mov_b32 s32, 0xffff0000")
    scc = "s[36:37]"
    d = [16 + 2 * r for r in range(8)]
    GW = 32
    for r in range(16, 40):
        e(f"v_mov_b32 v{r}, 0")
    e("s_lshl_b32 s27, s26, 1")
    e("s_add_u32 s27, s27, s20")
    e("s_lshl_b32 s28, s27, 10")
    e(f"v_lshlrev_b32 v{VOFG}, 1, v{LANE}")
    e(f"v_add_u32 v{VOFF}, s28, v{VOFG}")
    for r in range(8):
        e(f"buffer_load_short_d16_hi v{d[r]}, v{VOFF}, s[12:15], 0 offen offset:{128*r}")
        e(f"buffer_load_short_d16_hi v{d[r]+1}, v{VOFF}, s[12:15], 0 offen offset:{1024+128*r}")
    for r in range(8):
        e(f"buffer_load_short_d16_hi v{GW+r}, v{VOFG}, s[16:19], 0 offen offset:{128*r}")
    WRL, WIL = 4 * WREG, 4 * WREG + 4128
    WS0 = 40
    VWO = 10
    e("s_mul_i32 s29, s20, 514")
    e(f"v_lshlrev_b32 v{VWO}, 4, v0")
    e(f"v_add_u32 v{T0}, s29, v{VWO}")
    e(f"buffer_load_dwordx4 {Q(WS0)}, v{T0}, s[44:47], 0 offen")
    e(f"buffer_load_dwordx4 {Q(WS0+4)}, v{T0}, s[48:51], 0 offen")
    e(f"v_add_u32 v{T1}, 0x1000, v{T0}")
    e(f"buffer_load_dwordx4 {Q(WS0+8)}, v{T1}, s[44:47], 0 offen")
    e(f"buffer_load_dwordx4 {Q(WS0+12)}, v{T1}, s[48:51], 0 offen")
    fft512_addrs(k, LANE, 26, A_W1, A_RD, A_W2, T0)
    tw2 = {r: 64 + 2 * r for r in range(1, 8)}
    tw3 = {r: 80 + 2 * r for r in range(1, 8)}
    e(f"v_and_b32 v{T0}, 7, v{LANE}")
    gen_twiddles(k, T0, 64, range(1, 8), tw2, T1)
    gen_twiddles(k, LANE, 512, range(1, 8), tw3, T1)
    pool = Pool([96 + 2 * i for i in range(8)])
    e("s_waitcnt vmcnt(4)")
    ACCG = 56
    for r in range(8):
        t = pool.alloc()
        gp = GW + (r & ~1)
        sel = r & 1
        e(f"v_pk_mul_f32 {P(t)}, {P(d[r])}, {P(gp)} op_sel:[0,{sel}] op_sel_hi:[1,{sel}]")
        e(f"v_cvt_pk_bf16_f32 v{T0}, v{t}, v{t+1}")
        if r == 0:
            e(f"v_lshlrev_b32 v{ACCG}, 16, v{T0}")
            e(f"v_and_b32 v{ACCG+1}, s32, v{T0}")
        else:
            e(f"v_lshlrev_b32 v{t}, 16, v{T0}")
            e(f"v_and_b32 v{t+1}, s32, v{T0}")
            cadd(k, ACCG, ACCG, t)
        pool.free(t)
    for sh in (1, 2, 4, 8):
        for h in range(2):
            e(f"v_add_f32_dpp v{ACCG+h}, v{ACCG+h}, v{ACCG+h} row_shr:{sh} row_mask:0xf bank_mask:0xf bound_ctrl:0")
    for h in range(2):
        e(f"v_add_f32_dpp v{ACCG+h}, v{ACCG+h}, v{ACCG+h} row_bcast:15 row_mask:0xa bank_mask:0xf")
    for h in range(2):
        e(f"v_add_f32_dpp v{ACCG+h}, v{ACCG+h}, v{ACCG+h} row_bcast:31 row_mask:0xc bank_mask:0xf")
    e(f"v_cvt_pk_bf16_f32 v{T0}, v{ACCG}, v{ACCG+1}")
    e(f"v_lshlrev_b32 v{ACCG}, 16, v{T0}")
    e(f"v_and_b32 v{ACCG+1}, s32, v{T0}")
    e(f"s_mov_b32 s31, {LOG2E}")
    for h in range(2):
        e(f"v_mul_f32 v{ACCG+h}, s31, v{ACCG+h}")
    for h in range(2):
        e(f"v_exp_f32 v{ACCG+h}, -v{ACCG+h}")
    for h in range(2):
        e(f"v_add_f32 v{ACCG+h}, 1.0, v{ACCG+h}")
    for h in range(2):
        e(f"v_rcp_f32 v{ACCG+h}, v{ACCG+h}")
    e(f"v_cvt_pk_bf16_f32 v{T0}, v{ACCG}, v{ACCG+1}")
    e(f"v_lshlrev_b32 v{ACCG}, 16, v{T0}")
    e(f"v_and_b32 v{ACCG+1}, s32, v{T0}")
    e(f"v_mov_b32 v{T0}, s27")
    e(f"v_lshlrev_b32 v{T0}, 2, v{T0}")
    e(f"v_cmp_eq_u32 vcc, 63, v{LANE}")
    e("s_and_saveexec_b64 s[38:39], vcc")
    e(f"buffer_store_dwordx2 {P(ACCG)}, v{T0}, s[60:63], 0 offen")
    e("s_mov_b64 exec, s[38:39]")
    z = fft512_wave(k, pool, d, -1, scc, A_W1, A_RD, A_W2, tw2, tw3)
    e(f"v_lshlrev_b32 v{T0}, 3, v{LANE}")
    e(f"v_add_u32 v{T0}, s40, v{T0}")
    for r in range(8):
        e(f"ds_write_b64 v{T0}, {P(z[r])} offset:{512*r}")
    e("s_waitcnt vmcnt(0)")
    e(f"ds_write_b128 v{VWO}, {Q(WS0)} offset:{WRL}")
    e(f"ds_write_b128 v{VWO}, {Q(WS0+4)} offset:{WIL}")
    e("v_cmp_eq_u32 vcc, 0, v0")
    e("s_and_saveexec_b64 s[38:39], vcc")
    e(f"ds_write_b128 v{VWO}, {Q(WS0+8)} offset:{WRL+4096}")
    e(f"ds_write_b128 v{VWO}, {Q(WS0+12)} offset:{WIL+4096}")
    e("s_mov_b64 exec, s[38:39]")
    e("s_waitcnt lgkmcnt(0)")
    e("s_barrier")
    AK, AM, VO = 10, 11, 12
    e(f"v_and_b32 v{T0}, 3, v0")
    e(f"v_lshrrev_b32 v{T1}, 2, v0")
    e(f"v_mul_u32_u24 v{T2}, {WREG}, v{T0}")
    e(f"v_lshl_add_u32 v{AK}, v{T1}, 3, v{T2}")
    e(f"v_sub_u32 v{AM}, 64, v{T1}")
    e(f"v_lshl_add_u32 v{AM}, v{AM}, 3, v{T2}")
    e(f"v_lshlrev_b32 v{VO}, 14, v{T1}")
    e(f"v_lshl_add_u32 v{VO}, v{T0}, 4, v{VO}")
    e("s_lshl_b32 s29, s20, 3")
    e(f"v_add_u32 v{VO}, s29, v{VO}")
    ZK = [16 + 2 * i for i in range(4)]
    ZM = [24 + 2 * i for i in range(4)]
    for i in range(4):
        e(f"ds_read_b64 {P(ZK[i])}, v{AK} offset:{512*i}")
    e(f"v_add_u32 v{T1}, {512*7}, v{AM}")
    e(f"v_cmp_gt_u32 vcc, 4, v0")
    e(f"v_cndmask_b32 v{T1}, v{T1}, v{T2}, vcc")
    e(f"ds_read_b64 {P(ZM[0])}, v{T1}")
    for i in range(1, 4):
        e(f"ds_read_b64 {P(ZM[i])}, v{AM} offset:{512*(7-i)}")
    ZX = 32
    e(f"ds_read_b64 {P(ZX)}, v{T2} offset:{256*8}")
    WO = 40
    e(f"v_lshlrev_b32 v{T1}, 1, v0")
    WO2 = 96
    for jj in range(8):
        e(f"ds_read_u16 v{WO+jj}, v{T1} offset:{WRL+514*jj}")
        e(f"ds_read_u16 v{WO2+jj}, v{T1} offset:{WIL+514*jj}")
    OUT = 48
    e("s_waitcnt lgkmcnt(0)")
    for jj in range(8):
        e(f"v_lshl_or_b32 v{WO+jj}, v{WO2+jj}, 16, v{WO+jj}")
    for i in range(4):
        o = OUT + 4 * i
        e(f"v_pk_add_f32 {P(o)}, {P(ZK[i])}, {P(ZM[i])} neg_hi:[0,1]")
        e(f"v_pk_add_f32 {P(o+2)}, {P(ZK[i])}, {P(ZM[i])} op_sel:[1,1] op_sel_hi:[0,0] neg_hi:[1,0]")
        e(f"s_mov_b32 s41, {i*64*16384}")
        e(f"buffer_store_dwordx4 {Q(o)}, v{VO}, s[52:55], s41 offen")
    e(f"v_lshlrev_b32 v{T1}, 13, v0")
    e("s_lshl_b32 s29, s20, 2")
    e(f"v_add_u32 v{T1}, s29, v{T1}")
    e(f"buffer_store_dwordx4 {Q(WO)}, v{T1}, s[56:59], 0 offen")
    e(f"buffer_store_dwordx4 {Q(WO+4)}, v{T1}, s[56:59], 0 offen offset:16")
    e("v_cmp_gt_u32 vcc, 4, v0")
    e("s_and_saveexec_b64 s[38:39], vcc")
    o = 64
    e(f"v_add_f32 v{o}, v{ZX}, v{ZX}")
    e(f"v_mov_b32 v{o+1}, 0")
    e(f"v_add_f32 v{o+2}, v{ZX+1}, v{ZX+1}")
    e(f"v_mov_b32 v{o+3}, 0")
    e(f"s_mov_b32 s41, {256*16384}")
    e(f"buffer_store_dwordx4 {Q(o)}, v{VO}, s[52:55], s41 offen")
    e("s_mov_b64 exec, s[38:39]")
    e("v_cmp_eq_u32 vcc, 0, v0")
    e("s_and_saveexec_b64 s[38:39], vcc")
    WX = 68
    e(f"v_mov_b32 v{T1}, 512")
    for jj in range(8):
        e(f"ds_read_u16 v{WX+jj}, v{T1} offset:{WRL+514*jj}")
        e(f"ds_read_u16 v{WO2+jj}, v{T1} offset:{WIL+514*jj}")
    e(f"v_mov_b32 v{T1}, s29")
    e(f"s_mov_b32 s41, {256*8192}")
    e("s_waitcnt lgkmcnt(0)")
    for jj in range(8):
        e(f"v_lshl_or_b32 v{WX+jj}, v{WO2+jj}, 16, v{WX+jj}")
    e(f"buffer_store_dwordx4 {Q(WX)}, v{T1}, s[56:59], s41 offen")
    e(f"buffer_store_dwordx4 {Q(WX+4)}, v{T1}, s[56:59], s41 offen offset:16")
    e("s_mov_b64 exec, s[38:39]")
    e("s_endpgm")


def gen_k1():
    k = Kern("k1")
    k.label("gm_k1_kernel")
    k.e("s_cmp_ge_u32 s2, 512")
    k.e("s_cbranch_scc1 K1_end")
    k.e("s_cmp_ge_u32 s2, 256")
    k.e("s_cbranch_scc1 K1_fft")
    k1_gemm(k)
    k.label("K1_fft")
    k1_fft(k)
    k.label("K1_end")
    k.e("s_endpgm")
    return k


def k2_fft(k):
    e = k.e
    k.c("---- column FFT role ----")
    e("s_load_dwordx2 s[10:11], s[0:1], 80")
    e("s_sub_u32 s20, s2, 256")
    e("s_lshl_b32 s21, s20, 14")
    e("s_lshl_b32 s22, s20, 13")
    e(f"s_add_u32 s23, s21, {X1_OFF}")
    e(f"s_add_u32 s24, s21, {Y1_OFF}")
    e(f"s_add_u32 s25, s22, {WT_OFF}")
    e("s_waitcnt lgkmcnt(0)")
    srd_off(k, 12, 10, 11, "s23", 16384)
    srd_off(k, 16, 10, 11, "s24", 16384)
    srd_off(k, 44, 10, 11, "s25", 8192)
    e(f"s_mov_b32 s36, {RSQ2}")
    e(f"s_mov_b32 s37, {RSQ2}")
    e(f"s_mov_b32 s34, {SCALE}")
    e(f"s_mov_b32 s35, {SCALE}")
    e("s_mov_b32 s32, 0xffff0000")
    scc = "s[36:37]"
    T0, T1, T2 = 2, 3, 4
    V8, V4 = 5, 6
    A_W1, A_RD, A_W2, A_W3 = 7, 8, 9, 10
    d = [16 + 2 * r for r in range(8)]
    WQ = 32
    e(f"v_lshlrev_b32 v{V8}, 3, v0")
    e(f"v_lshlrev_b32 v{V4}, 2, v0")
    e("s_movk_i32 s48, 0x1000")
    e("s_movk_i32 s49, 0x2000")
    e("s_movk_i32 s50, 0x3000")
    so = ["0", "s48", "s49", "s50"]
    for m in range(8):
        e(f"buffer_load_dwordx2 {P(d[m])}, v{V8}, s[12:15], {so[m>>1]} offen offset:{(m&1)*2048}")
    for m in range(8):
        e(f"buffer_load_dword v{WQ+m}, v{V4}, s[44:47], {so[m>>2]} offen offset:{(m&3)*1024}")
    e(f"v_mul_u32_u24 v{A_W1}, 72, v0")
    e(f"v_lshrrev_b32 v{T0}, 3, v0")
    e(f"v_add_u32 v{A_RD}, v{T0}, v0")
    e(f"v_lshlrev_b32 v{A_RD}, 3, v{A_RD}")
    e(f"v_mul_u32_u24 v{A_W2}, 576, v{T0}")
    e(f"v_and_b32 v{T1}, 7, v0")
    e(f"v_lshl_add_u32 v{A_W2}, v{T1}, 3, v{A_W2}")
    e(f"v_lshrrev_b32 v{T0}, 6, v0")
    e(f"v_mul_u32_u24 v{A_W3}, 4608, v{T0}")
    e(f"v_and_b32 v{T0}, 63, v0")
    e(f"v_lshrrev_b32 v{T2}, 3, v{T0}")
    e(f"v_add_u32 v{T2}, v{T2}, v{T0}")
    e(f"v_lshl_add_u32 v{A_W3}, v{T2}, 3, v{A_W3}")
    tw2 = {r: 40 + 2 * r for r in range(1, 8)}
    tw3 = {r: 56 + 2 * r for r in range(1, 8)}
    tw4a = {r: 72 + 2 * r for r in range(1, 4)}
    tw4b = {r: 80 + 2 * r for r in range(1, 4)}
    TT = 12
    gen_twiddles(k, T1, 64, range(1, 8), tw2, TT)
    gen_twiddles(k, T0, 512, range(1, 8), tw3, TT)
    gen_twiddles(k, 0, 2048, range(1, 4), tw4a, TT)
    e(f"v_add_u32 v{T0}, 256, v0")
    gen_twiddles(k, T0, 2048, range(1, 4), tw4b, TT)
    pool = Pool([88 + 2 * i for i in range(10)])
    BUF = 18432
    state = {"buf": 0}

    def exch(d, awr, stride):
        b = state["buf"] * BUF
        for r in range(8):
            e(f"ds_write_b64 v{awr}, {P(d[r])} offset:{b + stride*r}")
        e("s_waitcnt lgkmcnt(0)")
        e("s_barrier")
        for r in range(8):
            e(f"ds_read_b64 {P(d[r])}, v{A_RD} offset:{b + 2304*r}")
        e("s_waitcnt lgkmcnt(0)")
        state["buf"] ^= 1

    def fft2048(d, dirn):
        cj = dirn > 0
        d = fft8(k, pool, d, dirn, scc)
        exch(d, A_W1, 8)
        for r in range(1, 8):
            ctw(k, pool, d[r], tw2[r], cj)
        d = fft8(k, pool, d, dirn, scc)
        exch(d, A_W2, 72)
        for r in range(1, 8):
            ctw(k, pool, d[r], tw3[r], cj)
        d = fft8(k, pool, d, dirn, scc)
        exch(d, A_W3, 576)
        for r in range(1, 4):
            ctw(k, pool, d[2 * r], tw4a[r], cj)
            ctw(k, pool, d[2 * r + 1], tw4b[r], cj)
        ya = fft4(k, pool, [d[0], d[2], d[4], d[6]], dirn)
        yb = fft4(k, pool, [d[1], d[3], d[5], d[7]], dirn)
        return [ya[0], yb[0], ya[1], yb[1], ya[2], yb[2], ya[3], yb[3]]

    e("s_waitcnt vmcnt(8)")
    d = fft2048(d, -1)
    e("s_waitcnt vmcnt(0)")
    for m in range(8):
        w = pool.alloc()
        e(f"v_lshlrev_b32 v{w}, 16, v{WQ+m}")
        e(f"v_and_b32 v{w+1}, s32, v{WQ+m}")
        e(f"v_pk_mul_f32 {P(w)}, {P(w)}, s[34:35]")
        ctw(k, pool, d[m], w, False)
        pool.free(w)
    d = fft2048(d, +1)
    for m in range(8):
        e(f"buffer_store_dwordx2 {P(d[m])}, v{V8}, s[16:19], {so[m>>1]} offen offset:{(m&1)*2048}")
    e("s_endpgm")


def k2_gemm(k):
    e = k.e
    k.c("---- GEMM2 role ----")
    e("s_load_dwordx2 s[4:5], s[0:1], 48")
    e("s_load_dwordx2 s[10:11], s[0:1], 80")
    e("s_and_b32 s20, s2, 7")
    e("s_lshr_b32 s21, s2, 3")
    e("s_lshr_b32 s22, s20, 1")
    e("s_and_b32 s23, s20, 1")
    e("s_and_b32 s24, s21, 7")
    e("s_lshr_b32 s25, s21, 3")
    e("s_lshl_b32 s22, s22, 3")
    e("s_add_u32 s22, s22, s24")
    e("s_lshl_b32 s22, s22, 6")
    e("s_lshl_b32 s23, s23, 2")
    e("s_add_u32 s23, s23, s25")
    e("s_lshl_b32 s23, s23, 7")
    LANE, T0, T1, T2, T3 = 1, 2, 3, 4, 5
    e(f"v_lshrrev_b32 v{T0}, 6, v0")
    e(f"v_and_b32 v{LANE}, 63, v0")
    e(f"v_readfirstlane_b32 s26, v{T0}")
    e("s_waitcnt lgkmcnt(0)")
    srd_off(k, 12, 10, 11, H_OFF, H_SIZE)
    srd_off(k, 16, 10, 11, H_OFF, H_SIZE)
    e("s_cmp_eq_u32 s26, 3")
    e(f"s_cselect_b32 s18, 0, {H_SIZE}")
    srd(k, 44, 4, 5, F * D * 2)
    srd_off(k, 48, 10, 11, B_OFF, B_SIZE)
    ACC = 64
    AB = 128
    BF = 192
    VA = 8
    VD = 12
    VR = 16
    VO = 20
    e(f"v_and_b32 v{T0}, 15, v{LANE}")
    e(f"v_add_u32 v{T0}, s22, v{T0}")
    e(f"v_lshrrev_b32 v{T1}, 4, v{LANE}")
    e(f"v_mul_u32_u24 v{VA}, 2752, v{T0}")
    e(f"v_lshl_add_u32 v{VA}, v{T1}, 4, v{VA}")
    e("s_lshl_b32 s27, s26, 6")
    e(f"v_add_u32 v{VA}, s27, v{VA}")
    for mt in range(1, 4):
        e(f"v_add_u32 v{VA+mt}, {mt*16*2752}, v{VA}")
    e("s_lshl_b32 s27, s26, 4")
    e(f"v_add_u32 v{T0}, s27, v{T0}")
    e(f"v_lshlrev_b32 v{VO}, 10, v{T0}")
    e(f"v_lshl_add_u32 v{VO}, v{T1}, 3, v{VO}")
    e(f"v_add_u32 v{VO}, s23, v{VO}")
    e(f"v_lshrrev_b32 v{T0}, 3, v{LANE}")
    e(f"v_lshlrev_b32 v{T0}, 10, v{T0}")
    e(f"v_add_u32 v{T0}, s23, v{T0}")
    e(f"v_and_b32 v{T1}, 1, v{LANE}")
    e(f"v_lshl_add_u32 v{T0}, v{T1}, 4, v{T0}")
    e(f"v_bfe_u32 v{T1}, v{LANE}, 1, 2")
    e(f"v_bfe_u32 v{T2}, v{LANE}, 4, 1")
    e(f"v_xor_b32 v{T1}, v{T1}, v{T2}")
    e(f"v_lshl_add_u32 v{VD}, v{T1}, 5, v{T0}")
    e(f"v_xor_b32 v{T1}, 2, v{T1}")
    e(f"v_lshl_add_u32 v{VD+1}, v{T1}, 5, v{T0}")
    e("s_lshl_b32 s28, s26, 15")
    e("s_lshl_b32 s29, s26, 14")

    def loads(i):
        srdn = "s[16:19]" if i == 10 else "s[12:15]"
        for mt in range(4):
            e(f"buffer_load_dwordx4 {Q(AB + (i%4)*16 + mt*4)}, v{VA+mt}, {srdn}, 0 offen offset:{i*256}")
        for q in range(4):
            e(f"s_add_u32 m0, s29, {(i%4)*4096 + q*1024}")
            e(f"s_add_u32 s30, s28, {i*131072 + q*8192}")
            e(f"buffer_load_dwordx4 v{VD + (q&1)}, s[44:47], s30 offen lds")

    loads(0)
    loads(1)
    loads(2)
    e(f"v_lshrrev_b32 v{T0}, 4, v{LANE}")
    e(f"v_bfe_u32 v{T1}, v{LANE}, 2, 2")
    e(f"v_lshl_add_u32 v{T0}, v{T0}, 3, v{T1}")
    e(f"v_lshlrev_b32 v{T0}, 7, v{T0}")
    e(f"v_and_b32 v{T1}, 3, v{LANE}")
    e(f"v_lshl_add_u32 v{T0}, v{T1}, 3, v{T0}")
    e(f"v_add_u32 v{T0}, s29, v{T0}")
    e(f"v_bfe_u32 v{T1}, v{LANE}, 3, 2")
    for nt in range(4):
        e(f"v_xor_b32 v{T2}, {nt}, v{T1}")
        e(f"v_lshl_add_u32 v{VR+nt}, v{T2}, 5, v{T0}")

    def breads(i):
        for nt in range(4):
            reg = BF + (i % 2) * 16 + nt * 4
            e(f"ds_read_b64_tr_b16 {P(reg)}, v{VR+nt} offset:{(i%4)*4096}")
            e(f"ds_read_b64_tr_b16 {P(reg+2)}, v{VR+nt} offset:{(i%4)*4096+512}")

    NST = 11
    e("s_waitcnt vmcnt(16)")
    breads(0)
    for i in range(NST):
        e("s_waitcnt lgkmcnt(0)")
        if i + 3 < NST:
            loads(i + 3)
        cnt = 0
        for mt in range(4):
            for nt in range(4):
                acc = ACC + (mt * 4 + nt) * 4
                cin = "0" if i == 0 else Q(acc)
                e(f"v_mfma_f32_16x16x32_bf16 {Q(acc)}, {Q(BF + (i%2)*16 + nt*4)}, {Q(AB + (i%4)*16 + mt*4)}, {cin}")
                cnt += 1
                if cnt == 8 and i + 1 < NST:
                    later = min(NST - 1, i + 3) - (i + 1)
                    e(f"s_waitcnt vmcnt({8*later})")
                    breads(i + 1)
    e("s_nop 7")
    e(f"v_lshlrev_b32 v{T0}, 4, v{LANE}")
    e(f"v_add_u32 v{T1}, s29, v{T0}")
    for mt in range(4):
        for nt in range(4):
            acc = ACC + (mt * 4 + nt) * 4
            e(f"ds_write_b128 v{T1}, {Q(acc)} offset:{(mt*4+nt)*1024}")
    e("s_waitcnt lgkmcnt(0)")
    e("s_barrier")
    e("s_lshl_b32 s27, s26, 12")
    e(f"v_add_u32 v{T1}, s27, v{T0}")
    RD = 128
    for v in range(4):
        for nt in range(4):
            e(f"ds_read_b128 {Q(RD + (v*4+nt)*4)}, v{T1} offset:{v*16384 + nt*1024}")
    e("s_waitcnt lgkmcnt(0)")
    for nt in range(4):
        a0 = RD + nt * 4
        for h in range(2):
            cadd(k, a0 + 2 * h, a0 + 2 * h, RD + (4 + nt) * 4 + 2 * h)
            cadd(k, RD + (8 + nt) * 4 + 2 * h, RD + (8 + nt) * 4 + 2 * h, RD + (12 + nt) * 4 + 2 * h)
            cadd(k, a0 + 2 * h, a0 + 2 * h, RD + (8 + nt) * 4 + 2 * h)
        o = 192 + nt * 2
        e(f"v_cvt_pk_bf16_f32 v{o}, v{a0}, v{a0+1}")
        e(f"v_cvt_pk_bf16_f32 v{o+1}, v{a0+2}, v{a0+3}")
        e(f"buffer_store_dwordx2 {P(o)}, v{VO}, s[48:51], 0 offen offset:{nt*32}")
    e("s_endpgm")


def gen_k2():
    k = Kern("k2")
    k.label("gm_k2_kernel")
    k.e("s_cmp_ge_u32 s2, 513")
    k.e("s_cbranch_scc1 K2_end")
    k.e("s_cmp_ge_u32 s2, 256")
    k.e("s_cbranch_scc1 K2_fft")
    k2_gemm(k)
    k.label("K2_fft")
    k2_fft(k)
    k.label("K2_end")
    k.e("s_endpgm")
    return k


def gen_k3():
    k = Kern("k3")
    e = k.e
    k.label("gm_k3_kernel")
    e("s_cmp_ge_u32 s2, 256")
    e("s_cbranch_scc1 K3_end")
    e("s_load_dwordx2 s[10:11], s[0:1], 80")
    e("s_load_dwordx2 s[4:5], s[0:1], 64")
    e("s_lshl_b32 s20, s2, 3")
    LANE, T0, T1, T2 = 1, 2, 3, 4
    A_W1, A_RD, A_W2 = 5, 6, 7
    VO, AK, AM, VB = 8, 9, 10, 11
    e(f"v_lshrrev_b32 v{T0}, 6, v0")
    e(f"v_and_b32 v{LANE}, 63, v0")
    e(f"v_readfirstlane_b32 s26, v{T0}")
    e("s_waitcnt lgkmcnt(0)")
    srd_off(k, 12, 10, 11, Y1_OFF, X1_SIZE)
    srd_off(k, 16, 10, 11, B_OFF, B_SIZE)
    srd(k, 44, 4, 5, S * D * 2)
    e("s_lshl_b32 s27, s26, 1")
    e("s_add_u32 s27, s27, s20")
    e("s_lshl_b32 s28, s27, 2")
    e(f"s_add_u32 s28, s28, {G_OFF}")
    e("s_load_dwordx2 s[48:49], s[10:11], s28")
    e(f"s_mov_b32 s36, {RSQ2}")
    e(f"s_mov_b32 s37, {RSQ2}")
    e("s_mov_b32 s32, 0xffff0000")
    scc = "s[36:37]"
    e(f"v_and_b32 v{T0}, 3, v0")
    e(f"v_lshrrev_b32 v{T1}, 2, v0")
    e(f"v_lshlrev_b32 v{VO}, 14, v{T1}")
    e(f"v_lshl_add_u32 v{VO}, v{T0}, 4, v{VO}")
    e("s_lshl_b32 s29, s20, 3")
    e(f"v_add_u32 v{VO}, s29, v{VO}")
    IN = 16
    for i in range(4):
        e(f"s_mov_b32 s41, {i*64*16384}")
        e(f"buffer_load_dwordx4 {Q(IN+4*i)}, v{VO}, s[12:15], s41 offen")
    e(f"s_mov_b32 s41, {256*16384}")
    e(f"v_lshlrev_b32 v{T2}, 4, v{T0}")
    e(f"v_add_u32 v{T2}, s29, v{T2}")
    e(f"buffer_load_dwordx4 {Q(IN+16)}, v{T2}, s[12:15], s41 offen")
    BQ = 36
    e("s_lshl_b32 s28, s27, 10")
    e(f"v_lshlrev_b32 v{VB}, 1, v{LANE}")
    e(f"v_add_u32 v{VB}, s28, v{VB}")
    for r in range(8):
        e(f"buffer_load_ushort v{BQ+2*r}, v{VB}, s[16:19], 0 offen offset:{128*r}")
        e(f"buffer_load_ushort v{BQ+2*r+1}, v{VB}, s[16:19], 0 offen offset:{1024+128*r}")
    e(f"v_mul_u32_u24 v{T2}, {WREG}, v{T0}")
    e(f"v_lshrrev_b32 v{AK}, 3, v{T1}")
    e(f"v_add_u32 v{AK}, v{AK}, v{T1}")
    e(f"v_lshl_add_u32 v{AK}, v{AK}, 3, v{T2}")
    e(f"v_sub_u32 v{AM}, 64, v{T1}")
    e(f"v_lshrrev_b32 v{T1}, 3, v{AM}")
    e(f"v_add_u32 v{AM}, v{AM}, v{T1}")
    e(f"v_lshl_add_u32 v{AM}, v{AM}, 3, v{T2}")
    XK = 12
    e(f"v_add_u32 v{XK}, {8*256+8*32}, v{T2}")
    fft512_addrs(k, LANE, 26, A_W1, A_RD, A_W2, T0)
    tw2 = {r: 64 + 2 * r for r in range(1, 8)}
    tw3 = {r: 80 + 2 * r for r in range(1, 8)}
    e(f"v_and_b32 v{T0}, 7, v{LANE}")
    gen_twiddles(k, T0, 64, range(1, 8), tw2, T1)
    gen_twiddles(k, LANE, 512, range(1, 8), tw3, T1)
    pool = Pool([96 + 2 * i for i in range(10)])
    e("s_waitcnt vmcnt(16)")
    e("v_cmp_gt_u32 vcc, 4, v0")
    e(f"v_mov_b32 v{T0}, 0")
    e(f"v_cndmask_b32 v{IN+1}, v{IN+1}, v{T0}, vcc")
    e(f"v_cndmask_b32 v{IN+3}, v{IN+3}, v{T0}, vcc")
    for i in range(4):
        a, b = IN + 4 * i, IN + 4 * i + 2
        z = pool.alloc()
        zm = pool.alloc()
        crot(k, z, a, b, +1)
        e(f"v_pk_add_f32 {P(zm)}, {P(a)}, {P(b)} op_sel:[0,1] op_sel_hi:[1,0] neg_hi:[1,0]")
        e(f"ds_write_b64 v{AK}, {P(z)} offset:{576*i}")
        e(f"ds_write_b64 v{AM}, {P(zm)} offset:{576*(7-i)}")
        pool.free(z)
        pool.free(zm)
    e("s_and_saveexec_b64 s[38:39], vcc")
    e(f"v_mov_b32 v{IN+17}, v{IN+18}")
    e(f"ds_write_b64 v{XK}, {P(IN+16)}")
    e("s_mov_b64 exec, s[38:39]")
    e("s_waitcnt lgkmcnt(0)")
    e("s_barrier")
    d = [16 + 2 * r for r in range(8)]
    for r in range(8):
        e(f"ds_read_b64 {P(d[r])}, v{A_RD} offset:{576*r}")
    e("s_waitcnt lgkmcnt(0)")
    y = fft512_wave(k, pool, d, +1, scc, A_W1, A_RD, A_W2, tw2, tw3)
    e(f"v_mov_b32 v{T0}, s48")
    e(f"v_mov_b32 v{T1}, s49")
    e(f"v_sub_f32 v{T0}, 1.0, v{T0}")
    e(f"v_sub_f32 v{T1}, 1.0, v{T1}")
    e(f"v_cvt_pk_bf16_f32 v{T0}, v{T0}, v{T1}")
    OM = 52
    e(f"v_lshlrev_b32 v{OM}, 16, v{T0}")
    e(f"v_and_b32 v{OM+1}, s32, v{T0}")
    e("s_waitcnt vmcnt(0)")
    for r in range(8):
        t = pool.alloc()
        u = pool.alloc()
        e(f"v_cvt_pk_bf16_f32 v{T0}, v{y[r]}, v{y[r]+1}")
        e(f"v_lshlrev_b32 v{t}, 16, v{T0}")
        e(f"v_and_b32 v{t+1}, s32, v{T0}")
        e(f"v_pk_mul_f32 {P(t)}, {P(t)}, s[48:49]")
        e(f"v_lshlrev_b32 v{u}, 16, v{BQ+2*r}")
        e(f"v_lshlrev_b32 v{u+1}, 16, v{BQ+2*r+1}")
        e(f"v_pk_mul_f32 {P(u)}, {P(u)}, {P(OM)}")
        e(f"v_cvt_pk_bf16_f32 v{T0}, v{t}, v{t+1}")
        e(f"v_cvt_pk_bf16_f32 v{T1}, v{u}, v{u+1}")
        e(f"v_lshlrev_b32 v{t}, 16, v{T0}")
        e(f"v_and_b32 v{t+1}, s32, v{T0}")
        e(f"v_lshlrev_b32 v{u}, 16, v{T1}")
        e(f"v_and_b32 v{u+1}, s32, v{T1}")
        cadd(k, t, t, u)
        e(f"v_cvt_pk_bf16_f32 v{y[r]}, v{t}, v{t+1}")
        e(f"buffer_store_short v{y[r]}, v{VB}, s[44:47], 0 offen offset:{128*r}")
        e(f"buffer_store_short_d16_hi v{y[r]}, v{VB}, s[44:47], 0 offen offset:{1024+128*r}")
        pool.free(t)
        pool.free(u)
    k.label("K3_end")
    e("s_endpgm")
    return k


HEADER = """; Kernarg layout for this problem (88 bytes, ptrs only, base s[0:1]):
"""


def descriptor(name, vgpr, sgpr=96):
    acc = (vgpr + 3) // 4 * 4
    return f""".amdhsa_kernel {name}
  .amdhsa_next_free_vgpr {vgpr}
  .amdhsa_next_free_sgpr {sgpr}
  .amdhsa_accum_offset {acc}
  .amdhsa_group_segment_fixed_size 0
  .amdhsa_kernarg_size 88
  .amdhsa_user_sgpr_count 2
  .amdhsa_user_sgpr_kernarg_segment_ptr 1
  .amdhsa_system_sgpr_workgroup_id_x 1
  .amdhsa_float_denorm_mode_32 3
.end_amdhsa_kernel
"""


def main(out):
    ks = [(gen_k1(), "gm_k1_kernel", 512, 73728, 232),
          (gen_k2(), "gm_k2_kernel", 513, 65536, 224),
          (gen_k3(), "gm_k3_kernel", 256, 4 * WREG, 120)]
    txt = HEADER
    for _, nm, grid, lds, _v in ks:
        txt += f"; @launch kernel={nm} grid=({grid},1,1) block=(256,1,1) lds={lds}\n"
    txt += '.amdgcn_target "amdgcn-amd-amdhsa--gfx950"\n.text\n'
    for k, nm, _, _, _v in ks:
        txt += f".globl {nm}\n.p2align 8\n.type {nm},@function\n"
        asmlib.lastw_tuple.clear()
        txt += "\n".join(fix_hazards(k.L)) + "\n"
    txt += '.section .rodata,"a"\n'
    for _, nm, _, _, v in ks:
        txt += ".p2align 6\n" + descriptor(nm, v)
    open(out, "w").write(txt)


if __name__ == "__main__":
    main(sys.argv[1] if len(sys.argv) > 1 else f"cdna_kernels/{NAME}.s")
```

```python
import sys, os
import asmlib
from asmlib import Kern, Pool, P, Q, fix_hazards

SKIP = os.environ.get("SKIP", "").split(",")
NAME = "gated_mix__spectral_gfnet__swiglu_ffn__prompt"
S, D, F = 2048, 512, 1376
H_OFF = 0
X1_OFF = 8 << 20
Y1_OFF = 16 << 20
WT_OFF = 24 << 20
B_OFF = 28 << 20
G_OFF = 32 << 20
H_SIZE = S * F * 2
X1_SIZE = 257 * S * 8
WT_SIZE = 257 * S * 4
B_SIZE = S * D * 2
RSQ2 = 0x3F3504F3
LOG2E = 0x3FB8AA3B
SCALE = 0x35000000


def cadd(k, d, a, b):
    k.e(f"v_pk_add_f32 {P(d)}, {P(a)}, {P(b)}")


def csub(k, d, a, b):
    k.e(f"v_pk_add_f32 {P(d)}, {P(a)}, {P(b)} neg_lo:[0,1] neg_hi:[0,1]")


def crot(k, d, a, b, sgn, nega=False):
    na = 1 if nega else 0
    if sgn < 0:
        k.e(f"v_pk_add_f32 {P(d)}, {P(a)}, {P(b)} op_sel:[0,1] op_sel_hi:[1,0] neg_lo:[{na},0] neg_hi:[{na},1]")
    else:
        k.e(f"v_pk_add_f32 {P(d)}, {P(a)}, {P(b)} op_sel:[0,1] op_sel_hi:[1,0] neg_lo:[{na},1] neg_hi:[{na},0]")


def bfly(k, pool, a, b):
    t = pool.alloc()
    csub(k, t, a, b)
    cadd(k, a, a, b)
    pool.free(b)
    return a, t


def fft4(k, pool, c, dirn):
    d0, d2 = bfly(k, pool, c[0], c[2])
    d1, e3 = bfly(k, pool, c[1], c[3])
    y0, y2 = bfly(k, pool, d0, d1)
    y1 = pool.alloc()
    crot(k, y1, d2, e3, dirn)
    crot(k, d2, d2, e3, -dirn)
    pool.free(e3)
    return [y0, y1, y2, d2]


def fft8(k, pool, a, dirn, scc):
    b0, b4 = bfly(k, pool, a[0], a[4])
    b1, b5 = bfly(k, pool, a[1], a[5])
    b2, b6 = bfly(k, pool, a[2], a[6])
    b3, b7 = bfly(k, pool, a[3], a[7])
    ye = fft4(k, pool, [b0, b1, b2, b3], dirn)
    d0 = pool.alloc()
    crot(k, d0, b4, b6, dirn)
    crot(k, b4, b4, b6, -dirn)
    d2 = b4
    pool.free(b6)
    crot(k, b5, b5, b5, dirn)
    crot(k, b7, b7, b7, dirn, nega=True)
    D1, E3 = bfly(k, pool, b5, b7)
    y0 = pool.alloc()
    k.e(f"v_pk_fma_f32 {P(y0)}, {P(D1)}, {scc}, {P(d0)}")
    k.e(f"v_pk_fma_f32 {P(d0)}, {P(D1)}, {scc}, {P(d0)} neg_lo:[1,0,0] neg_hi:[1,0,0]")
    y2 = d0
    pool.free(D1)
    y1 = pool.alloc()
    pos = "op_sel:[1,0,0] op_sel_hi:[0,1,1] neg_lo:[1,0,0]"
    neg = "op_sel:[1,0,0] op_sel_hi:[0,1,1] neg_hi:[1,0,0]"
    k.e(f"v_pk_fma_f32 {P(y1)}, {P(E3)}, {scc}, {P(d2)} {pos if dirn > 0 else neg}")
    k.e(f"v_pk_fma_f32 {P(d2)}, {P(E3)}, {scc}, {P(d2)} {neg if dirn > 0 else pos}")
    y3 = d2
    pool.free(E3)
    return [ye[0], y0, ye[1], y1, ye[2], y2, ye[3], y3]


def ctw(k, pool, a, w, conj):
    t = pool.alloc()
    if not conj:
        k.e(f"v_pk_mul_f32 {P(t)}, {P(a)}, {P(w)} op_sel:[0,0] op_sel_hi:[0,1]")
        k.e(f"v_pk_fma_f32 {P(a)}, {P(a)}, {P(w)}, {P(t)} op_sel:[1,1,0] op_sel_hi:[1,0,1] neg_lo:[0,1,0]")
    else:
        k.e(f"v_pk_mul_f32 {P(t)}, {P(a)}, {P(w)} op_sel:[0,0] op_sel_hi:[0,1] neg_hi:[0,1]")
        k.e(f"v_pk_fma_f32 {P(a)}, {P(a)}, {P(w)}, {P(t)} op_sel:[1,1,0] op_sel_hi:[1,0,1]")
    pool.free(t)


def fbits(x):
    import struct
    return "0x%08x" % struct.unpack("<I", struct.pack("<f", x))[0]


def gen_twiddles(k, vk, denom, rs, dst, tmp):
    k.e(f"v_cvt_f32_u32 v{tmp}, v{vk}")
    k.e(f"v_mul_f32 v{tmp}, {fbits(-1.0 / denom)}, v{tmp}")
    for r in rs:
        if r == 1:
            src = tmp
        else:
            k.e(f"v_mul_f32 v{tmp+1}, {fbits(float(r))}, v{tmp}")
            src = tmp + 1
        k.e(f"v_cos_f32 v{dst[r]}, v{src}")
        k.e(f"v_sin_f32 v{dst[r]+1}, v{src}")


def srd(k, d, lo, hi, size):
    k.e(f"s_mov_b32 s{d}, s{lo}")
    k.e(f"s_mov_b32 s{d+1}, s{hi}")
    k.e(f"s_mov_b32 s{d+2}, {size}")
    k.e(f"s_mov_b32 s{d+3}, 0x00020000")


def srd_off(k, d, lo, hi, off, size):
    k.e(f"s_add_u32 s{d}, s{lo}, {off}")
    k.e(f"s_addc_u32 s{d+1}, s{hi}, 0")
    k.e(f"s_mov_b32 s{d+2}, {size}")
    k.e(f"s_mov_b32 s{d+3}, 0x00020000")


STAMP = os.environ.get("STAMP", "")
ST_OFF = 40 << 20


class Stamps:
    def __init__(self, k, on):
        self.k, self.on, self.n = k, on, 0

    def __call__(self):
        if not self.on or self.n >= 30:
            return
        self.k.e(f"s_memtime s[{96}:{97}]")
        self.k.e("s_waitcnt lgkmcnt(0)")
        self.k.e(f"s_mov_b32 s{64+self.n}, s96")
        self.n += 1

    def dump(self, wslo, wshi):
        if not self.on:
            return
        e = self.k.e
        e("s_memrealtime s[96:97]")
        e("s_waitcnt lgkmcnt(0)")
        e("s_mov_b32 s95, s96")
        e("s_lshl_b32 s96, s2, 7")
        e(f"s_add_u32 s96, s96, {ST_OFF}")
        srd_off(self.k, 60, wslo, wshi, "s96", 128)
        e("v_cmp_eq_u32 vcc, 0, v0")
        e("s_and_saveexec_b64 s[98:99], vcc")
        e("v_mov_b32 v1, 0")
        for i in list(range(self.n)) + [30, 31]:
            e(f"v_mov_b32 v2, s{64+i}")
            e(f"buffer_store_dword v2, v1, s[60:63], 0 offen offset:{4*i}")
        e("s_mov_b64 exec, s[98:99]")

    def start(self):
        if not self.on:
            return
        self.k.e("s_memrealtime s[96:97]")
        self.k.e("s_waitcnt lgkmcnt(0)")
        self.k.e("s_mov_b32 s94, s96")
        self()

def fft512_wave(k, pool, d, dirn, scc, a_w1, a_rd, a_w2, tw2, tw3):
    d = fft8(k, pool, d, dirn, scc)
    for r in range(8):
        k.e(f"ds_write_b64 v{a_w1}, {P(d[r])} offset:{8*r}")
    for r in range(8):
        k.e(f"ds_read_b64 {P(d[r])}, v{a_rd} offset:{576*r}")
    k.e("s_waitcnt lgkmcnt(0)")
    for r in range(1, 8):
        ctw(k, pool, d[r], tw2[r], dirn > 0)
    d = fft8(k, pool, d, dirn, scc)
    for r in range(8):
        k.e(f"ds_write_b64 v{a_w2}, {P(d[r])} offset:{72*r}")
    for r in range(8):
        k.e(f"ds_read_b64 {P(d[r])}, v{a_rd} offset:{576*r}")
    k.e("s_waitcnt lgkmcnt(0)")
    for r in range(1, 8):
        ctw(k, pool, d[r], tw3[r], dirn > 0)
    d = fft8(k, pool, d, dirn, scc)
    return d


WREG = 4672


def fft512_addrs(k, vlane, swave, a_w1, a_rd, a_w2, tmp):
    k.e(f"s_mul_i32 s40, s{swave}, {WREG}")
    k.e(f"v_mul_u32_u24 v{a_w1}, 72, v{vlane}")
    k.e(f"v_add_u32 v{a_w1}, s40, v{a_w1}")
    k.e(f"v_lshrrev_b32 v{tmp}, 3, v{vlane}")
    k.e(f"v_add_u32 v{a_rd}, v{tmp}, v{vlane}")
    k.e(f"v_lshlrev_b32 v{a_rd}, 3, v{a_rd}")
    k.e(f"v_add_u32 v{a_rd}, s40, v{a_rd}")
    k.e(f"v_mul_u32_u24 v{a_w2}, 576, v{tmp}")
    k.e(f"v_and_b32 v{tmp}, 7, v{vlane}")
    k.e(f"v_lshl_add_u32 v{a_w2}, v{tmp}, 3, v{a_w2}")
    k.e(f"v_add_u32 v{a_w2}, s40, v{a_w2}")


def k1_gemm(k):
    e = k.e
    k.c("---- GEMM1 role ----")
    if "g1" in SKIP: e("s_endpgm")
    st = Stamps(k, STAMP == "g1")
    if os.environ.get("G1LIM"):
        e(f"s_cmp_ge_u32 s2, {os.environ['G1LIM']}")
        e("s_cbranch_scc1 K1_end")
    st.start()
    e("s_load_dwordx2 s[4:5], s[0:1], 0")
    e("s_load_dwordx2 s[6:7], s[0:1], 32")
    e("s_load_dwordx2 s[8:9], s[0:1], 40")
    e("s_load_dwordx2 s[10:11], s[0:1], 80")
    e("s_and_b32 s20, s2, 7")
    e("s_lshr_b32 s21, s2, 3")
    e("s_and_b32 s22, s20, 1")
    e("s_lshr_b32 s23, s20, 1")
    e("s_and_b32 s24, s21, 7")
    e("s_lshr_b32 s25, s21, 3")
    e("s_lshl_b32 s22, s22, 3")
    e("s_add_u32 s22, s22, s24")
    e("s_lshl_b32 s23, s23, 2")
    e("s_add_u32 s23, s23, s25")
    e("s_cmp_ge_u32 s23, 15")
    e("s_cbranch_scc1 K1_end")
    e("s_mul_i32 s23, s23, 96")
    e("s_min_u32 s23, s23, 1280")
    e("s_lshl_b32 s22, s22, 7")
    LANE, T0, T1, T2, T3, T4 = 1, 2, 3, 4, 5, 6
    e(f"v_lshrrev_b32 v{T0}, 6, v0")
    e(f"v_and_b32 v{LANE}, 63, v0")
    e(f"v_readfirstlane_b32 s26, v{T0}")
    SLOT = 20480
    ACC = 64
    XF = 160
    WF = 176
    DMA = 8
    VXD = 14
    VXR = 16
    VB = 24
    VH = 28
    e("s_lshl_b32 s27, s26, 5")
    e("s_add_u32 s27, s27, s22")
    e(f"v_lshrrev_b32 v{T0}, 2, v{LANE}")
    e(f"v_lshrrev_b32 v{T1}, 4, v{LANE}")
    e(f"v_and_b32 v{T2}, 1, v{T1}")
    e(f"v_lshlrev_b32 v{T2}, 1, v{T2}")
    e(f"v_lshrrev_b32 v{T3}, 1, v{T1}")
    e(f"v_mul_u32_u24 v{T3}, 3, v{T3}")
    e(f"v_xor_b32 v{T2}, v{T2}, v{T3}")
    e(f"v_and_b32 v{T3}, 3, v{LANE}")
    e(f"v_xor_b32 v{T2}, v{T2}, v{T3}")
    e(f"v_add_u32 v{T0}, s27, v{T0}")
    e(f"v_lshlrev_b32 v{VXD}, 10, v{T0}")
    e(f"v_lshl_add_u32 v{VXD}, v{T2}, 4, v{VXD}")
    e(f"v_add_u32 v{VXD+1}, 0x4000, v{VXD}")
    e("s_waitcnt lgkmcnt(0)")
    srd(k, 12, 4, 5, S * D * 2)
    srd_off(k, 16, 10, 11, H_OFF, H_SIZE)
    e("s_lshl_b32 s28, s23, 1")
    e("s_lshl_b32 s30, s26, 11")
    e("s_mul_i32 s31, s26, 3072")
    e("s_add_u32 s31, s31, 8192")
    e("s_mov_b32 s33, 0")

    def xdma(slot):
        for j in range(2):
            e(f"s_add_u32 m0, s30, {slot*SLOT + j*1024}")
            e("s_nop 0")
            e(f"buffer_load_dwordx4 v{VXD+j}, s[12:15], s33 offen lds")
        e("s_add_u32 s33, s33, 64")

    xdma(0)
    e("s_lshl_b32 s29, s26, 3")
    for i in range(3):
        a = DMA + 2 * i
        e(f"v_add_u32 v{T0}, {64*i}, v{LANE}")
        e(f"v_mul_u32_u24 v{T1}, 0xaab, v{T0}")
        e(f"v_lshrrev_b32 v{T1}, 16, v{T1}")
        e(f"v_mul_u32_u24 v{T2}, 24, v{T1}")
        e(f"v_sub_u32 v{T2}, v{T0}, v{T2}")
        e(f"v_add_u32 v{T1}, s29, v{T1}")
        e(f"v_bfe_u32 v{T3}, v{T1}, 1, 1")
        e(f"v_bfe_u32 v{T4}, v{T1}, 3, 1")
        e(f"v_lshl_or_b32 v{T3}, v{T4}, 1, v{T3}")
        e(f"v_lshrrev_b32 v{T4}, 1, v{T2}")
        e(f"v_xor_b32 v{T4}, v{T3}, v{T4}")
        e(f"v_and_b32 v{T2}, 1, v{T2}")
        e(f"v_mul_u32_u24 v{T1}, 2752, v{T1}")
        e(f"v_lshl_add_u32 v{T1}, v{T2}, 4, v{T1}")
        e(f"v_lshl_add_u32 v{T1}, v{T4}, 5, v{T1}")
        e(f"v_add_u32 v{T1}, s28, v{T1}")
        e(f"v_cmp_le_u32 vcc, 6, v{T4}")
        e(f"v_mov_b32 v{T2}, s6")
        e(f"v_mov_b32 v{T3}, s8")
        e(f"v_cndmask_b32 v{T2}, v{T2}, v{T3}, vcc")
        e(f"v_mov_b32 v{T3}, s7")
        e(f"v_mov_b32 v{T4}, s9")
        e(f"v_cndmask_b32 v{T3}, v{T3}, v{T4}, vcc")
        e(f"v_subrev_u32 v{T4}, 192, v{T1}")
        e(f"v_cndmask_b32 v{T1}, v{T1}, v{T4}, vcc")
        e(f"v_add_co_u32 v{a}, vcc, v{T2}, v{T1}")
        e(f"v_addc_co_u32 v{a+1}, vcc, 0, v{T3}, vcc")

    def wdma(slot):
        for i in range(3):
            a = DMA + 2 * i
            e(f"s_add_u32 m0, s31, {slot*SLOT + i*1024}")
            e("s_nop 0")
            e(f"global_load_lds_dwordx4 {P(a)}, off")
            e(f"v_add_co_u32 v{a}, vcc, {32*2752}, v{a}")
            e(f"v_addc_co_u32 v{a+1}, vcc, 0, v{a+1}, vcc")

    wdma(0)
    xdma(1)
    wdma(1)
    xdma(2)
    wdma(2)
    st()
    e(f"v_lshrrev_b32 v{T0}, 4, v{LANE}")
    e(f"v_bfe_u32 v{T1}, v{LANE}, 2, 2")
    e(f"v_lshl_add_u32 v{T0}, v{T0}, 3, v{T1}")
    e(f"v_mul_u32_u24 v{T0}, 384, v{T0}")
    e(f"v_and_b32 v{T1}, 3, v{LANE}")
    e(f"v_lshl_add_u32 v{T0}, v{T1}, 3, v{T0}")
    e(f"v_add_u32 v{T0}, 0x2000, v{T0}")
    e(f"v_bfe_u32 v{T1}, v{LANE}, 3, 2")
    for b in range(4):
        e(f"v_xor_b32 v{T2}, {b}, v{T1}")
        e(f"v_lshl_add_u32 v{VB+b}, v{T2}, 5, v{T0}")
    e(f"v_and_b32 v{T0}, 15, v{LANE}")
    e(f"v_lshrrev_b32 v{T1}, 2, v{T0}")
    e(f"v_and_b32 v{T2}, 1, v{T1}")
    e(f"v_lshlrev_b32 v{T2}, 1, v{T2}")
    e(f"v_lshrrev_b32 v{T3}, 1, v{T1}")
    e(f"v_mul_u32_u24 v{T3}, 3, v{T3}")
    e(f"v_xor_b32 v{T2}, v{T2}, v{T3}")
    e(f"v_lshrrev_b32 v{T3}, 4, v{LANE}")
    e(f"v_xor_b32 v{T2}, v{T2}, v{T3}")
    e(f"v_lshlrev_b32 v{VXR}, 6, v{T0}")
    e(f"v_lshl_add_u32 v{VXR}, v{T2}, 4, v{VXR}")
    e(f"v_add_u32 v{VXR}, s30, v{VXR}")
    e("s_lshr_b32 s34, s27, 4")
    e("s_mul_i32 s34, s34, 43")
    e("s_lshr_b32 s35, s23, 5")
    e("s_add_u32 s34, s34, s35")
    e("s_lshl_b32 s34, s34, 10")
    e(f"v_lshrrev_b32 v{T3}, 5, v{LANE}")
    e(f"v_lshl_add_u32 v{T0}, v{T3}, 4, v{T0}")
    e(f"v_lshlrev_b32 v{VH}, 4, v{T0}")
    e(f"v_bfe_u32 v{T3}, v{LANE}, 4, 1")
    e(f"v_lshl_add_u32 v{VH}, v{T3}, 3, v{VH}")
    e(f"v_add_u32 v{VH}, s34, v{VH}")
    for r in range(ACC, ACC + 96):
        e(f"v_mov_b32 v{r}, 0")

    LA, NS = 5, 8
    order = []
    for nt in range(6):
        order += [nt, 6 + nt]
    S_ = {"lds": 0, "pend": []}
    last_rd = {}

    def cross(u, issue, vm):
        e(f"s_waitcnt vmcnt({vm}) lgkmcnt(0)")
        e("s_barrier")
        st()
        for mt in range(2):
            e(f"ds_read_b128 {Q(XF + (u & 1)*8 + mt*4)}, v{VXR} offset:{u*SLOT + mt*1024}")
            S_["lds"] += 1
        if issue:
            sl = (u + 3) & 3
            for j in range(2):
                def f(j=j, sl=sl):
                    e(f"s_add_u32 m0, s30, {sl*SLOT + j*1024}")
                    e("s_nop 0")
                    e(f"buffer_load_dwordx4 v{VXD+j}, s[12:15], s33 offen lds")
                    if j == 1:
                        e("s_add_u32 s33, s33, 64")
                S_["pend"].append(f)
            for i in range(3):
                def f(i=i, sl=sl):
                    a = DMA + 2 * i
                    e(f"s_add_u32 m0, s31, {sl*SLOT + i*1024}")
                    e("s_nop 0")
                    e(f"global_load_lds_dwordx4 {P(a)}, off")
                    e(f"v_add_co_u32 v{a}, vcc, {32*2752}, v{a}")
                    e(f"v_addc_co_u32 v{a+1}, vcc, 0, v{a+1}, vcc")
                S_["pend"].append(f)

    def rd(u, jj, ring):
        G = order[jj]
        a, b = G >> 2, G & 3
        off = u * SLOT + a * 128
        reg = WF + (ring % NS) * 4
        e(f"ds_read_b64_tr_b16 {P(reg)}, v{VB+b} offset:{off}")
        e(f"ds_read_b64_tr_b16 {P(reg+2)}, v{VB+b} offset:{off+1536}")
        S_["lds"] += 2
        last_rd[ring] = S_["lds"]

    def body(steps, nxt):
        allst = steps + ([nxt] if nxt else [])
        n = 12 * len(steps)
        tot = n + (LA + 1 if nxt else 0)
        for j in range(n):
            e(f"s_waitcnt lgkmcnt({S_['lds'] - last_rd[j]})")
            u = steps[j // 12][0]
            G = order[j % 12]
            reg = WF + (j % NS) * 4
            for mt in range(2):
                acc = ACC + ((mt * 12) + G) * 4
                e(f"v_mfma_f32_16x16x32_bf16 {Q(acc)}, {Q(reg)}, {Q(XF + (u & 1)*8 + mt*4)}, {Q(acc)}")
            jn = j + LA + 1
            if jn < tot:
                sidx = jn // 12
                if jn % 12 == 0:
                    cross(*allst[sidx])
                rd(allst[sidx][0], jn % 12, jn)
            if S_["pend"]:
                S_["pend"].pop(0)()
        assert not S_["pend"]
        car = {j - n: last_rd[j] for j in range(n, tot)}
        last_rd.clear()
        last_rd.update(car)

    cross(0, True, 10)
    for j in range(LA + 1):
        rd(0, j, j)
    while S_["pend"]:
        S_["pend"].pop(0)()
    base_lds = S_["lds"]
    e("s_mov_b32 s36, 0")
    k.label("G1_loop")
    body([(0, True, 10), (1, True, 10), (2, True, 10), (3, True, 10)], (0, True, 10))
    e("s_add_u32 s36, s36, 1")
    e("s_cmp_lt_u32 s36, 3")
    e("s_cbranch_scc1 G1_loop")
    body([(0, True, 10), (1, False, 10), (2, False, 5), (3, False, 0)], None)
    st()
    e("s_nop 7")
    e(f"s_mov_b32 s40, {LOG2E | 0x80000000}")
    e(f"s_mov_b32 s41, {LOG2E | 0x80000000}")
    e("s_mov_b32 s42, 1.0")
    e("s_mov_b32 s43, 1.0")
    e("s_mov_b32 s32, 0xffff0000")
    TT = 160
    for mt in range(2):
        for nt in range(6):
            g = ACC + (mt * 12 + nt) * 4
            u = ACC + (mt * 12 + 6 + nt) * 4
            t = TT + ((mt * 6 + nt) % 2) * 20
            e(f"v_cvt_pk_bf16_f32 v{t}, v{g}, v{g+1}")
            e(f"v_cvt_pk_bf16_f32 v{t+1}, v{g+2}, v{g+3}")
            e(f"v_cvt_pk_bf16_f32 v{t+2}, v{u}, v{u+1}")
            e(f"v_cvt_pk_bf16_f32 v{t+3}, v{u+2}, v{u+3}")
            for i in range(2):
                e(f"v_lshlrev_b32 v{t+4+2*i}, 16, v{t+i}")
                e(f"v_and_b32 v{t+5+2*i}, s32, v{t+i}")
            for i in range(2):
                e(f"v_pk_mul_f32 {P(t+12+2*i)}, {P(t+4+2*i)}, s[40:41]")
            for i in range(4):
                e(f"v_exp_f32 v{t+12+i}, v{t+12+i}")
            for i in range(2):
                e(f"v_lshlrev_b32 v{t+8+2*i}, 16, v{t+2+i}")
                e(f"v_and_b32 v{t+9+2*i}, s32, v{t+2+i}")
            for i in range(2):
                e(f"v_pk_add_f32 {P(t+12+2*i)}, {P(t+12+2*i)}, s[42:43]")
            for i in range(4):
                e(f"v_rcp_f32 v{t+12+i}, v{t+12+i}")
            for i in range(2):
                e(f"v_pk_mul_f32 {P(t+12+2*i)}, {P(t+12+2*i)}, {P(t+4+2*i)}")
            e(f"v_cvt_pk_bf16_f32 v{t}, v{t+12}, v{t+13}")
            e(f"v_cvt_pk_bf16_f32 v{t+1}, v{t+14}, v{t+15}")
            for i in range(2):
                e(f"v_lshlrev_b32 v{t+4+2*i}, 16, v{t+i}")
                e(f"v_and_b32 v{t+5+2*i}, s32, v{t+i}")
            for i in range(2):
                e(f"v_pk_mul_f32 {P(t+4+2*i)}, {P(t+4+2*i)}, {P(t+8+2*i)}")
            e(f"v_cvt_pk_bf16_f32 v{t+16}, v{t+4}, v{t+5}")
            e(f"v_cvt_pk_bf16_f32 v{t+17}, v{t+6}, v{t+7}")
            if mt == 1 and nt == 0:
                e(f"v_add_u32 v{VH}, {43*1024}, v{VH}")
            e(f"buffer_store_dwordx2 {P(t+16)}, v{VH}, s[16:19], 0 offen offset:{(nt>>1)*1024 + (nt&1)*512}")
    st()
    e("s_waitcnt vmcnt(0)")
    st()
    st.dump(10, 11)
    e("s_endpgm")


def k1_fft(k):
    e = k.e
    k.c("---- row FFT role ----")
    if "f1" in SKIP: e("s_endpgm")
    e("s_load_dwordx2 s[4:5], s[0:1], 0")
    e("s_load_dwordx2 s[6:7], s[0:1], 8")
    e("s_load_dwordx2 s[8:9], s[0:1], 16")
    e("s_load_dwordx2 s[10:11], s[0:1], 80")
    e("s_load_dwordx2 s[34:35], s[0:1], 56")
    e("s_sub_u32 s20, s2, 256")
    e("s_lshl_b32 s20, s20, 3")
    LANE, T0, T1, T2 = 1, 2, 3, 4
    A_W1, A_RD, A_W2 = 5, 6, 7
    VOFF, VOFG = 8, 9
    e(f"v_lshrrev_b32 v{T0}, 6, v0")
    e(f"v_and_b32 v{LANE}, 63, v0")
    e(f"v_readfirstlane_b32 s26, v{T0}")
    e("s_waitcnt lgkmcnt(0)")
    srd(k, 12, 4, 5, S * D * 2)
    srd(k, 16, 34, 35, D * 2)
    srd(k, 44, 6, 7, S * 257 * 2)
    srd(k, 48, 8, 9, S * 257 * 2)
    srd_off(k, 52, 10, 11, X1_OFF, X1_SIZE)
    srd_off(k, 56, 10, 11, WT_OFF, WT_SIZE)
    srd_off(k, 60, 10, 11, G_OFF, S * 4)
    e(f"s_mov_b32 s36, {RSQ2}")
    e(f"s_mov_b32 s37, {RSQ2}")
    e("s_mov_b32 s32, 0xffff0000")
    scc = "s[36:37]"
    d = [16 + 2 * r for r in range(8)]
    GW = 32
    for r in range(16, 40):
        e(f"v_mov_b32 v{r}, 0")
    e("s_lshl_b32 s27, s26, 1")
    e("s_add_u32 s27, s27, s20")
    e("s_lshl_b32 s28, s27, 10")
    e(f"v_lshlrev_b32 v{VOFG}, 1, v{LANE}")
    e(f"v_add_u32 v{VOFF}, s28, v{VOFG}")
    for r in range(8):
        e(f"buffer_load_short_d16_hi v{d[r]}, v{VOFF}, s[12:15], 0 offen offset:{128*r}")
        e(f"buffer_load_short_d16_hi v{d[r]+1}, v{VOFF}, s[12:15], 0 offen offset:{1024+128*r}")
    for r in range(8):
        e(f"buffer_load_short_d16_hi v{GW+r}, v{VOFG}, s[16:19], 0 offen offset:{128*r}")
    WRL, WIL = 4 * WREG, 4 * WREG + 4128
    WS0 = 40
    VWO = 10
    e("s_mul_i32 s29, s20, 514")
    e(f"v_lshlrev_b32 v{VWO}, 4, v0")
    e(f"v_add_u32 v{T0}, s29, v{VWO}")
    e(f"buffer_load_dwordx4 {Q(WS0)}, v{T0}, s[44:47], 0 offen")
    e(f"buffer_load_dwordx4 {Q(WS0+4)}, v{T0}, s[48:51], 0 offen")
    e(f"v_add_u32 v{T1}, 0x1000, v{T0}")
    e(f"buffer_load_dwordx4 {Q(WS0+8)}, v{T1}, s[44:47], 0 offen")
    e(f"buffer_load_dwordx4 {Q(WS0+12)}, v{T1}, s[48:51], 0 offen")
    fft512_addrs(k, LANE, 26, A_W1, A_RD, A_W2, T0)
    tw2 = {r: 64 + 2 * r for r in range(1, 8)}
    tw3 = {r: 80 + 2 * r for r in range(1, 8)}
    e(f"v_and_b32 v{T0}, 7, v{LANE}")
    gen_twiddles(k, T0, 64, range(1, 8), tw2, T1)
    gen_twiddles(k, LANE, 512, range(1, 8), tw3, T1)
    pool = Pool([96 + 2 * i for i in range(8)])
    e("s_waitcnt vmcnt(4)")
    ACCG = 56
    for r in range(8):
        t = pool.alloc()
        gp = GW + (r & ~1)
        sel = r & 1
        e(f"v_pk_mul_f32 {P(t)}, {P(d[r])}, {P(gp)} op_sel:[0,{sel}] op_sel_hi:[1,{sel}]")
        e(f"v_cvt_pk_bf16_f32 v{T0}, v{t}, v{t+1}")
        if r == 0:
            e(f"v_lshlrev_b32 v{ACCG}, 16, v{T0}")
            e(f"v_and_b32 v{ACCG+1}, s32, v{T0}")
        else:
            e(f"v_lshlrev_b32 v{t}, 16, v{T0}")
            e(f"v_and_b32 v{t+1}, s32, v{T0}")
            cadd(k, ACCG, ACCG, t)
        pool.free(t)
    for sh in (1, 2, 4, 8):
        for h in range(2):
            e(f"v_add_f32_dpp v{ACCG+h}, v{ACCG+h}, v{ACCG+h} row_shr:{sh} row_mask:0xf bank_mask:0xf bound_ctrl:0")
    for h in range(2):
        e(f"v_add_f32_dpp v{ACCG+h}, v{ACCG+h}, v{ACCG+h} row_bcast:15 row_mask:0xa bank_mask:0xf")
    for h in range(2):
        e(f"v_add_f32_dpp v{ACCG+h}, v{ACCG+h}, v{ACCG+h} row_bcast:31 row_mask:0xc bank_mask:0xf")
    e(f"v_cvt_pk_bf16_f32 v{T0}, v{ACCG}, v{ACCG+1}")
    e(f"v_lshlrev_b32 v{ACCG}, 16, v{T0}")
    e(f"v_and_b32 v{ACCG+1}, s32, v{T0}")
    e(f"s_mov_b32 s31, {LOG2E}")
    for h in range(2):
        e(f"v_mul_f32 v{ACCG+h}, s31, v{ACCG+h}")
    for h in range(2):
        e(f"v_exp_f32 v{ACCG+h}, -v{ACCG+h}")
    for h in range(2):
        e(f"v_add_f32 v{ACCG+h}, 1.0, v{ACCG+h}")
    for h in range(2):
        e(f"v_rcp_f32 v{ACCG+h}, v{ACCG+h}")
    e(f"v_cvt_pk_bf16_f32 v{T0}, v{ACCG}, v{ACCG+1}")
    e(f"v_lshlrev_b32 v{ACCG}, 16, v{T0}")
    e(f"v_and_b32 v{ACCG+1}, s32, v{T0}")
    e(f"v_mov_b32 v{T0}, s27")
    e(f"v_lshlrev_b32 v{T0}, 2, v{T0}")
    e(f"v_cmp_eq_u32 vcc, 63, v{LANE}")
    e("s_and_saveexec_b64 s[38:39], vcc")
    e(f"buffer_store_dwordx2 {P(ACCG)}, v{T0}, s[60:63], 0 offen")
    e("s_mov_b64 exec, s[38:39]")
    z = fft512_wave(k, pool, d, -1, scc, A_W1, A_RD, A_W2, tw2, tw3)
    e(f"v_lshlrev_b32 v{T0}, 3, v{LANE}")
    e(f"v_add_u32 v{T0}, s40, v{T0}")
    for r in range(8):
        e(f"ds_write_b64 v{T0}, {P(z[r])} offset:{512*r}")
    e("s_waitcnt vmcnt(0)")
    e(f"ds_write_b128 v{VWO}, {Q(WS0)} offset:{WRL}")
    e(f"ds_write_b128 v{VWO}, {Q(WS0+4)} offset:{WIL}")
    e("v_cmp_eq_u32 vcc, 0, v0")
    e("s_and_saveexec_b64 s[38:39], vcc")
    e(f"ds_write_b128 v{VWO}, {Q(WS0+8)} offset:{WRL+4096}")
    e(f"ds_write_b128 v{VWO}, {Q(WS0+12)} offset:{WIL+4096}")
    e("s_mov_b64 exec, s[38:39]")
    e("s_waitcnt lgkmcnt(0)")
    e("s_barrier")
    AK, AM, VO = 10, 11, 12
    e(f"v_and_b32 v{T0}, 3, v0")
    e(f"v_lshrrev_b32 v{T1}, 2, v0")
    e(f"v_mul_u32_u24 v{T2}, {WREG}, v{T0}")
    e(f"v_lshl_add_u32 v{AK}, v{T1}, 3, v{T2}")
    e(f"v_sub_u32 v{AM}, 64, v{T1}")
    e(f"v_lshl_add_u32 v{AM}, v{AM}, 3, v{T2}")
    e(f"v_lshlrev_b32 v{VO}, 14, v{T1}")
    e(f"v_lshl_add_u32 v{VO}, v{T0}, 4, v{VO}")
    e("s_lshl_b32 s29, s20, 3")
    e(f"v_add_u32 v{VO}, s29, v{VO}")
    ZK = [16 + 2 * i for i in range(4)]
    ZM = [24 + 2 * i for i in range(4)]
    for i in range(4):
        e(f"ds_read_b64 {P(ZK[i])}, v{AK} offset:{512*i}")
    e(f"v_add_u32 v{T1}, {512*7}, v{AM}")
    e(f"v_cmp_gt_u32 vcc, 4, v0")
    e(f"v_cndmask_b32 v{T1}, v{T1}, v{T2}, vcc")
    e(f"ds_read_b64 {P(ZM[0])}, v{T1}")
    for i in range(1, 4):
        e(f"ds_read_b64 {P(ZM[i])}, v{AM} offset:{512*(7-i)}")
    ZX = 32
    e(f"ds_read_b64 {P(ZX)}, v{T2} offset:{256*8}")
    WO = 40
    e(f"v_lshlrev_b32 v{T1}, 1, v0")
    WO2 = 96
    for jj in range(8):
        e(f"ds_read_u16 v{WO+jj}, v{T1} offset:{WRL+514*jj}")
        e(f"ds_read_u16 v{WO2+jj}, v{T1} offset:{WIL+514*jj}")
    OUT = 48
    e("s_waitcnt lgkmcnt(0)")
    for jj in range(8):
        e(f"v_lshl_or_b32 v{WO+jj}, v{WO2+jj}, 16, v{WO+jj}")
    for i in range(4):
        o = OUT + 4 * i
        e(f"v_pk_add_f32 {P(o)}, {P(ZK[i])}, {P(ZM[i])} neg_hi:[0,1]")
        e(f"v_pk_add_f32 {P(o+2)}, {P(ZK[i])}, {P(ZM[i])} op_sel:[1,1] op_sel_hi:[0,0] neg_hi:[1,0]")
        e(f"s_mov_b32 s41, {i*64*16384}")
        if "x1st" not in SKIP: e(f"buffer_store_dwordx4 {Q(o)}, v{VO}, s[52:55], s41 offen")
    e(f"v_lshlrev_b32 v{T1}, 13, v0")
    e("s_lshl_b32 s29, s20, 2")
    e(f"v_add_u32 v{T1}, s29, v{T1}")
    if "wtst" not in SKIP:
        e(f"buffer_store_dwordx4 {Q(WO)}, v{T1}, s[56:59], 0 offen")
        e(f"buffer_store_dwordx4 {Q(WO+4)}, v{T1}, s[56:59], 0 offen offset:16")
    e("v_cmp_gt_u32 vcc, 4, v0")
    e("s_and_saveexec_b64 s[38:39], vcc")
    o = 64
    e(f"v_add_f32 v{o}, v{ZX}, v{ZX}")
    e(f"v_mov_b32 v{o+1}, 0")
    e(f"v_add_f32 v{o+2}, v{ZX+1}, v{ZX+1}")
    e(f"v_mov_b32 v{o+3}, 0")
    e(f"s_mov_b32 s41, {256*16384}")
    e(f"buffer_store_dwordx4 {Q(o)}, v{VO}, s[52:55], s41 offen")
    e("s_mov_b64 exec, s[38:39]")
    e("v_cmp_eq_u32 vcc, 0, v0")
    e("s_and_saveexec_b64 s[38:39], vcc")
    WX = 68
    e(f"v_mov_b32 v{T1}, 512")
    for jj in range(8):
        e(f"ds_read_u16 v{WX+jj}, v{T1} offset:{WRL+514*jj}")
        e(f"ds_read_u16 v{WO2+jj}, v{T1} offset:{WIL+514*jj}")
    e(f"v_mov_b32 v{T1}, s29")
    e(f"s_mov_b32 s41, {256*8192}")
    e("s_waitcnt lgkmcnt(0)")
    for jj in range(8):
        e(f"v_lshl_or_b32 v{WX+jj}, v{WO2+jj}, 16, v{WX+jj}")
    e(f"buffer_store_dwordx4 {Q(WX)}, v{T1}, s[56:59], s41 offen")
    e(f"buffer_store_dwordx4 {Q(WX+4)}, v{T1}, s[56:59], s41 offen offset:16")
    e("s_mov_b64 exec, s[38:39]")
    e("s_endpgm")


def gen_k1():
    k = Kern("k1")
    k.label("gm_k1_kernel")
    k.e("s_cmp_ge_u32 s2, 512")
    k.e("s_cbranch_scc1 K1_end")
    k.e("s_cmp_ge_u32 s2, 256")
    k.e("s_cbranch_scc1 K1_fft")
    k1_gemm(k)
    k.label("K1_fft")
    k1_fft(k)
    k.label("K1_end")
    k.e("s_endpgm")
    return k


def k2_fft(k):
    e = k.e
    k.c("---- column FFT role ----")
    if "f2" in SKIP: e("s_endpgm")
    e("s_load_dwordx2 s[10:11], s[0:1], 80")
    e("s_sub_u32 s20, s2, 256")
    e("s_lshl_b32 s21, s20, 14")
    e("s_lshl_b32 s22, s20, 13")
    e(f"s_add_u32 s23, s21, {X1_OFF}")
    e(f"s_add_u32 s24, s21, {Y1_OFF}")
    e(f"s_add_u32 s25, s22, {WT_OFF}")
    e("s_waitcnt lgkmcnt(0)")
    srd_off(k, 12, 10, 11, "s23", 16384)
    srd_off(k, 16, 10, 11, "s24", 16384)
    srd_off(k, 44, 10, 11, "s25", 8192)
    e(f"s_mov_b32 s36, {RSQ2}")
    e(f"s_mov_b32 s37, {RSQ2}")
    e(f"s_mov_b32 s34, {SCALE}")
    e(f"s_mov_b32 s35, {SCALE}")
    e("s_mov_b32 s32, 0xffff0000")
    scc = "s[36:37]"
    T0, T1, T2 = 2, 3, 4
    V8, V4 = 5, 6
    A_W1, A_RD, A_W2, A_W3 = 7, 8, 9, 10
    d = [16 + 2 * r for r in range(8)]
    WQ = 32
    e(f"v_lshlrev_b32 v{V8}, 3, v0")
    e(f"v_lshlrev_b32 v{V4}, 2, v0")
    e("s_movk_i32 s48, 0x1000")
    e("s_movk_i32 s49, 0x2000")
    e("s_movk_i32 s50, 0x3000")
    so = ["0", "s48", "s49", "s50"]
    for m in range(8):
        e(f"buffer_load_dwordx2 {P(d[m])}, v{V8}, s[12:15], {so[m>>1]} offen offset:{(m&1)*2048}")
    for m in range(8):
        e(f"buffer_load_dword v{WQ+m}, v{V4}, s[44:47], {so[m>>2]} offen offset:{(m&3)*1024}")
    e(f"v_mul_u32_u24 v{A_W1}, 72, v0")
    e(f"v_lshrrev_b32 v{T0}, 3, v0")
    e(f"v_add_u32 v{A_RD}, v{T0}, v0")
    e(f"v_lshlrev_b32 v{A_RD}, 3, v{A_RD}")
    e(f"v_mul_u32_u24 v{A_W2}, 576, v{T0}")
    e(f"v_and_b32 v{T1}, 7, v0")
    e(f"v_lshl_add_u32 v{A_W2}, v{T1}, 3, v{A_W2}")
    e(f"v_lshrrev_b32 v{T0}, 6, v0")
    e(f"v_mul_u32_u24 v{A_W3}, 4608, v{T0}")
    e(f"v_and_b32 v{T0}, 63, v0")
    e(f"v_lshrrev_b32 v{T2}, 3, v{T0}")
    e(f"v_add_u32 v{T2}, v{T2}, v{T0}")
    e(f"v_lshl_add_u32 v{A_W3}, v{T2}, 3, v{A_W3}")
    tw2 = {r: 40 + 2 * r for r in range(1, 8)}
    tw3 = {r: 56 + 2 * r for r in range(1, 8)}
    tw4a = {r: 72 + 2 * r for r in range(1, 4)}
    tw4b = {r: 80 + 2 * r for r in range(1, 4)}
    TT = 12
    gen_twiddles(k, T1, 64, range(1, 8), tw2, TT)
    gen_twiddles(k, T0, 512, range(1, 8), tw3, TT)
    gen_twiddles(k, 0, 2048, range(1, 4), tw4a, TT)
    e(f"v_add_u32 v{T0}, 256, v0")
    gen_twiddles(k, T0, 2048, range(1, 4), tw4b, TT)
    pool = Pool([88 + 2 * i for i in range(10)])
    BUF = 18432
    state = {"buf": 0}

    def exch(d, awr, stride):
        b = state["buf"] * BUF
        for r in range(8):
            e(f"ds_write_b64 v{awr}, {P(d[r])} offset:{b + stride*r}")
        e("s_waitcnt lgkmcnt(0)")
        e("s_barrier")
        for r in range(8):
            e(f"ds_read_b64 {P(d[r])}, v{A_RD} offset:{b + 2304*r}")
        e("s_waitcnt lgkmcnt(0)")
        state["buf"] ^= 1

    def fft2048(d, dirn):
        cj = dirn > 0
        d = fft8(k, pool, d, dirn, scc)
        exch(d, A_W1, 8)
        for r in range(1, 8):
            ctw(k, pool, d[r], tw2[r], cj)
        d = fft8(k, pool, d, dirn, scc)
        exch(d, A_W2, 72)
        for r in range(1, 8):
            ctw(k, pool, d[r], tw3[r], cj)
        d = fft8(k, pool, d, dirn, scc)
        exch(d, A_W3, 576)
        for r in range(1, 4):
            ctw(k, pool, d[2 * r], tw4a[r], cj)
            ctw(k, pool, d[2 * r + 1], tw4b[r], cj)
        ya = fft4(k, pool, [d[0], d[2], d[4], d[6]], dirn)
        yb = fft4(k, pool, [d[1], d[3], d[5], d[7]], dirn)
        return [ya[0], yb[0], ya[1], yb[1], ya[2], yb[2], ya[3], yb[3]]

    e("s_waitcnt vmcnt(8)")
    d = fft2048(d, -1)
    e("s_waitcnt vmcnt(0)")
    for m in range(8):
        w = pool.alloc()
        e(f"v_lshlrev_b32 v{w}, 16, v{WQ+m}")
        e(f"v_and_b32 v{w+1}, s32, v{WQ+m}")
        e(f"v_pk_mul_f32 {P(w)}, {P(w)}, s[34:35]")
        ctw(k, pool, d[m], w, False)
        pool.free(w)
    d = fft2048(d, +1)
    for m in range(8):
        e(f"buffer_store_dwordx2 {P(d[m])}, v{V8}, s[16:19], {so[m>>1]} offen offset:{(m&1)*2048}")
    e("s_endpgm")


def k2_gemm(k):
    e = k.e
    k.c("---- GEMM2 role ----")
    if "g2" in SKIP: e("s_endpgm")
    st = Stamps(k, STAMP == "g2")
    st.start()
    e("s_load_dwordx2 s[4:5], s[0:1], 48")
    e("s_load_dwordx2 s[10:11], s[0:1], 80")
    e("s_and_b32 s20, s2, 7")
    e("s_lshr_b32 s21, s2, 3")
    e("s_lshr_b32 s22, s20, 1")
    e("s_and_b32 s23, s20, 1")
    e("s_and_b32 s24, s21, 7")
    e("s_lshr_b32 s25, s21, 3")
    e("s_lshl_b32 s22, s22, 3")
    e("s_add_u32 s22, s22, s24")
    e("s_lshl_b32 s22, s22, 6")
    e("s_lshl_b32 s23, s23, 2")
    e("s_add_u32 s23, s23, s25")
    e("s_lshl_b32 s23, s23, 7")
    LANE, T0, T1, T2, T3 = 1, 2, 3, 4, 5
    e(f"v_lshrrev_b32 v{T0}, 6, v0")
    e(f"v_and_b32 v{LANE}, 63, v0")
    e(f"v_readfirstlane_b32 s26, v{T0}")
    e("s_waitcnt lgkmcnt(0)")
    srd_off(k, 12, 10, 11, H_OFF, H_SIZE)
    srd_off(k, 16, 10, 11, H_OFF, H_SIZE)
    e("s_cmp_eq_u32 s26, 3")
    e(f"s_cselect_b32 s18, 0, {H_SIZE}")
    srd(k, 44, 4, 5, F * D * 2)
    srd_off(k, 48, 10, 11, B_OFF, B_SIZE)
    ACC = 64
    AB = 128
    BF = 192
    VA = 8
    VD = 12
    VR = 16
    VO = 20
    e(f"v_and_b32 v{T0}, 15, v{LANE}")
    e(f"v_add_u32 v{T0}, s22, v{T0}")
    e(f"v_lshrrev_b32 v{T1}, 4, v{LANE}")
    e("s_lshr_b32 s27, s22, 4")
    e("s_mul_i32 s27, s27, 43")
    e("s_add_u32 s27, s27, s26")
    e("s_lshl_b32 s27, s27, 10")
    e(f"v_lshlrev_b32 v{VA}, 4, v{LANE}")
    e(f"v_add_u32 v{VA}, s27, v{VA}")
    for mt in range(1, 4):
        e(f"v_add_u32 v{VA+mt}, {mt*43*1024}, v{VA}")
    e("s_lshl_b32 s27, s26, 4")
    e(f"v_add_u32 v{T0}, s27, v{T0}")
    e(f"v_lshlrev_b32 v{VO}, 10, v{T0}")
    e(f"v_lshl_add_u32 v{VO}, v{T1}, 3, v{VO}")
    e(f"v_add_u32 v{VO}, s23, v{VO}")
    e(f"v_lshrrev_b32 v{T0}, 3, v{LANE}")
    e(f"v_lshlrev_b32 v{T0}, 10, v{T0}")
    e(f"v_add_u32 v{T0}, s23, v{T0}")
    e(f"v_and_b32 v{T1}, 1, v{LANE}")
    e(f"v_lshl_add_u32 v{T0}, v{T1}, 4, v{T0}")
    e(f"v_bfe_u32 v{T1}, v{LANE}, 1, 2")
    e(f"v_bfe_u32 v{T2}, v{LANE}, 4, 1")
    e(f"v_xor_b32 v{T1}, v{T1}, v{T2}")
    e(f"v_lshl_add_u32 v{VD}, v{T1}, 5, v{T0}")
    e(f"v_xor_b32 v{T1}, 2, v{T1}")
    e(f"v_lshl_add_u32 v{VD+1}, v{T1}, 5, v{T0}")
    e("s_lshl_b32 s28, s26, 15")
    e("s_lshl_b32 s29, s26, 14")

    def loads(i):
        srdn = "s[16:19]" if i == 10 else "s[12:15]"
        e(f"s_mov_b32 s31, {i*4096}")
        for mt in range(4):
            e(f"buffer_load_dwordx4 {Q(AB + (i%4)*16 + mt*4)}, v{VA+mt}, {srdn}, s31 offen")
        for q in range(4):
            e(f"s_add_u32 m0, s29, {(i%4)*4096 + q*1024}")
            e(f"s_add_u32 s30, s28, {i*131072 + q*8192}")
            e(f"buffer_load_dwordx4 v{VD + (q&1)}, s[44:47], s30 offen lds")

    loads(0)
    loads(1)
    loads(2)
    e(f"v_lshrrev_b32 v{T0}, 4, v{LANE}")
    e(f"v_bfe_u32 v{T1}, v{LANE}, 2, 2")
    e(f"v_lshl_add_u32 v{T0}, v{T0}, 3, v{T1}")
    e(f"v_lshlrev_b32 v{T0}, 7, v{T0}")
    e(f"v_and_b32 v{T1}, 3, v{LANE}")
    e(f"v_lshl_add_u32 v{T0}, v{T1}, 3, v{T0}")
    e(f"v_add_u32 v{T0}, s29, v{T0}")
    e(f"v_bfe_u32 v{T1}, v{LANE}, 3, 2")
    for nt in range(4):
        e(f"v_xor_b32 v{T2}, {nt}, v{T1}")
        e(f"v_lshl_add_u32 v{VR+nt}, v{T2}, 5, v{T0}")

    def breads(i):
        for nt in range(4):
            reg = BF + (i % 2) * 16 + nt * 4
            e(f"ds_read_b64_tr_b16 {P(reg)}, v{VR+nt} offset:{(i%4)*4096}")
            e(f"ds_read_b64_tr_b16 {P(reg+2)}, v{VR+nt} offset:{(i%4)*4096+512}")

    NST = 11
    st()
    e("s_waitcnt vmcnt(16)")
    breads(0)
    for i in range(NST):
        e("s_waitcnt lgkmcnt(0)")
        st()
        if i + 3 < NST:
            loads(i + 3)
        cnt = 0
        for mt in range(4):
            for nt in range(4):
                acc = ACC + (mt * 4 + nt) * 4
                cin = "0" if i == 0 else Q(acc)
                e(f"v_mfma_f32_16x16x32_bf16 {Q(acc)}, {Q(BF + (i%2)*16 + nt*4)}, {Q(AB + (i%4)*16 + mt*4)}, {cin}")
                cnt += 1
                if cnt == 8 and i + 1 < NST:
                    later = min(NST - 1, i + 3) - (i + 1)
                    e(f"s_waitcnt vmcnt({8*later})")
                    breads(i + 1)
    st()
    e("s_nop 7")
    e(f"v_lshlrev_b32 v{T0}, 4, v{LANE}")
    e(f"v_add_u32 v{T1}, s29, v{T0}")
    for mt in range(4):
        for nt in range(4):
            acc = ACC + (mt * 4 + nt) * 4
            e(f"ds_write_b128 v{T1}, {Q(acc)} offset:{(mt*4+nt)*1024}")
    e("s_waitcnt lgkmcnt(0)")
    e("s_barrier")
    e("s_lshl_b32 s27, s26, 12")
    e(f"v_add_u32 v{T1}, s27, v{T0}")
    RD = 128
    for v in range(4):
        for nt in range(4):
            e(f"ds_read_b128 {Q(RD + (v*4+nt)*4)}, v{T1} offset:{v*16384 + nt*1024}")
    e("s_waitcnt lgkmcnt(0)")
    for nt in range(4):
        a0 = RD + nt * 4
        for h in range(2):
            cadd(k, a0 + 2 * h, a0 + 2 * h, RD + (4 + nt) * 4 + 2 * h)
            cadd(k, RD + (8 + nt) * 4 + 2 * h, RD + (8 + nt) * 4 + 2 * h, RD + (12 + nt) * 4 + 2 * h)
            cadd(k, a0 + 2 * h, a0 + 2 * h, RD + (8 + nt) * 4 + 2 * h)
        o = 192 + nt * 2
        e(f"v_cvt_pk_bf16_f32 v{o}, v{a0}, v{a0+1}")
        e(f"v_cvt_pk_bf16_f32 v{o+1}, v{a0+2}, v{a0+3}")
        e(f"buffer_store_dwordx2 {P(o)}, v{VO}, s[48:51], 0 offen offset:{nt*32}")
    st()
    e("s_waitcnt vmcnt(0)")
    st()
    st.dump(10, 11)
    e("s_endpgm")


def gen_k2():
    k = Kern("k2")
    k.label("gm_k2_kernel")
    k.e("s_cmp_ge_u32 s2, 513")
    k.e("s_cbranch_scc1 K2_end")
    k.e("s_cmp_ge_u32 s2, 256")
    k.e("s_cbranch_scc1 K2_fft")
    k2_gemm(k)
    k.label("K2_fft")
    k2_fft(k)
    k.label("K2_end")
    k.e("s_endpgm")
    return k


def gen_k3():
    k = Kern("k3")
    e = k.e
    k.label("gm_k3_kernel")
    e("s_cmp_ge_u32 s2, 256")
    e("s_cbranch_scc1 K3_end")
    if "k3" in SKIP: e("s_endpgm")
    e("s_load_dwordx2 s[10:11], s[0:1], 80")
    e("s_load_dwordx2 s[4:5], s[0:1], 64")
    e("s_lshl_b32 s20, s2, 3")
    LANE, T0, T1, T2 = 1, 2, 3, 4
    A_W1, A_RD, A_W2 = 5, 6, 7
    VO, AK, AM, VB = 8, 9, 10, 11
    e(f"v_lshrrev_b32 v{T0}, 6, v0")
    e(f"v_and_b32 v{LANE}, 63, v0")
    e(f"v_readfirstlane_b32 s26, v{T0}")
    e("s_waitcnt lgkmcnt(0)")
    srd_off(k, 12, 10, 11, Y1_OFF, X1_SIZE)
    srd_off(k, 16, 10, 11, B_OFF, B_SIZE)
    srd(k, 44, 4, 5, S * D * 2)
    e("s_lshl_b32 s27, s26, 1")
    e("s_add_u32 s27, s27, s20")
    e("s_lshl_b32 s28, s27, 2")
    e(f"s_add_u32 s28, s28, {G_OFF}")
    e("s_load_dwordx2 s[48:49], s[10:11], s28")
    e(f"s_mov_b32 s36, {RSQ2}")
    e(f"s_mov_b32 s37, {RSQ2}")
    e("s_mov_b32 s32, 0xffff0000")
    scc = "s[36:37]"
    e(f"v_and_b32 v{T0}, 3, v0")
    e(f"v_lshrrev_b32 v{T1}, 2, v0")
    e(f"v_lshlrev_b32 v{VO}, 14, v{T1}")
    e(f"v_lshl_add_u32 v{VO}, v{T0}, 4, v{VO}")
    e("s_lshl_b32 s29, s20, 3")
    e(f"v_add_u32 v{VO}, s29, v{VO}")
    IN = 16
    for i in range(4):
        e(f"s_mov_b32 s41, {i*64*16384}")
        e(f"buffer_load_dwordx4 {Q(IN+4*i)}, v{VO}, s[12:15], s41 offen")
    e(f"s_mov_b32 s41, {256*16384}")
    e(f"v_lshlrev_b32 v{T2}, 4, v{T0}")
    e(f"v_add_u32 v{T2}, s29, v{T2}")
    e(f"buffer_load_dwordx4 {Q(IN+16)}, v{T2}, s[12:15], s41 offen")
    BQ = 36
    e("s_lshl_b32 s28, s27, 10")
    e(f"v_lshlrev_b32 v{VB}, 1, v{LANE}")
    e(f"v_add_u32 v{VB}, s28, v{VB}")
    for r in range(8):
        e(f"buffer_load_ushort v{BQ+2*r}, v{VB}, s[16:19], 0 offen offset:{128*r}")
        e(f"buffer_load_ushort v{BQ+2*r+1}, v{VB}, s[16:19], 0 offen offset:{1024+128*r}")
    e(f"v_mul_u32_u24 v{T2}, {WREG}, v{T0}")
    e(f"v_lshrrev_b32 v{AK}, 3, v{T1}")
    e(f"v_add_u32 v{AK}, v{AK}, v{T1}")
    e(f"v_lshl_add_u32 v{AK}, v{AK}, 3, v{T2}")
    e(f"v_sub_u32 v{AM}, 64, v{T1}")
    e(f"v_lshrrev_b32 v{T1}, 3, v{AM}")
    e(f"v_add_u32 v{AM}, v{AM}, v{T1}")
    e(f"v_lshl_add_u32 v{AM}, v{AM}, 3, v{T2}")
    XK = 12
    e(f"v_add_u32 v{XK}, {8*256+8*32}, v{T2}")
    fft512_addrs(k, LANE, 26, A_W1, A_RD, A_W2, T0)
    tw2 = {r: 64 + 2 * r for r in range(1, 8)}
    tw3 = {r: 80 + 2 * r for r in range(1, 8)}
    e(f"v_and_b32 v{T0}, 7, v{LANE}")
    gen_twiddles(k, T0, 64, range(1, 8), tw2, T1)
    gen_twiddles(k, LANE, 512, range(1, 8), tw3, T1)
    pool = Pool([96 + 2 * i for i in range(10)])
    e("s_waitcnt vmcnt(16)")
    e("v_cmp_gt_u32 vcc, 4, v0")
    e(f"v_mov_b32 v{T0}, 0")
    e(f"v_cndmask_b32 v{IN+1}, v{IN+1}, v{T0}, vcc")
    e(f"v_cndmask_b32 v{IN+3}, v{IN+3}, v{T0}, vcc")
    for i in range(4):
        a, b = IN + 4 * i, IN + 4 * i + 2
        z = pool.alloc()
        zm = pool.alloc()
        crot(k, z, a, b, +1)
        e(f"v_pk_add_f32 {P(zm)}, {P(a)}, {P(b)} op_sel:[0,1] op_sel_hi:[1,0] neg_hi:[1,0]")
        e(f"ds_write_b64 v{AK}, {P(z)} offset:{576*i}")
        e(f"ds_write_b64 v{AM}, {P(zm)} offset:{576*(7-i)}")
        pool.free(z)
        pool.free(zm)
    e("s_and_saveexec_b64 s[38:39], vcc")
    e(f"v_mov_b32 v{IN+17}, v{IN+18}")
    e(f"ds_write_b64 v{XK}, {P(IN+16)}")
    e("s_mov_b64 exec, s[38:39]")
    e("s_waitcnt lgkmcnt(0)")
    e("s_barrier")
    d = [16 + 2 * r for r in range(8)]
    for r in range(8):
        e(f"ds_read_b64 {P(d[r])}, v{A_RD} offset:{576*r}")
    e("s_waitcnt lgkmcnt(0)")
    y = fft512_wave(k, pool, d, +1, scc, A_W1, A_RD, A_W2, tw2, tw3)
    e(f"v_mov_b32 v{T0}, s48")
    e(f"v_mov_b32 v{T1}, s49")
    e(f"v_sub_f32 v{T0}, 1.0, v{T0}")
    e(f"v_sub_f32 v{T1}, 1.0, v{T1}")
    e(f"v_cvt_pk_bf16_f32 v{T0}, v{T0}, v{T1}")
    OM = 52
    e(f"v_lshlrev_b32 v{OM}, 16, v{T0}")
    e(f"v_and_b32 v{OM+1}, s32, v{T0}")
    e("s_waitcnt vmcnt(0)")
    for r in range(8):
        t = pool.alloc()
        u = pool.alloc()
        e(f"v_cvt_pk_bf16_f32 v{T0}, v{y[r]}, v{y[r]+1}")
        e(f"v_lshlrev_b32 v{t}, 16, v{T0}")
        e(f"v_and_b32 v{t+1}, s32, v{T0}")
        e(f"v_pk_mul_f32 {P(t)}, {P(t)}, s[48:49]")
        e(f"v_lshlrev_b32 v{u}, 16, v{BQ+2*r}")
        e(f"v_lshlrev_b32 v{u+1}, 16, v{BQ+2*r+1}")
        e(f"v_pk_mul_f32 {P(u)}, {P(u)}, {P(OM)}")
        e(f"v_cvt_pk_bf16_f32 v{T0}, v{t}, v{t+1}")
        e(f"v_cvt_pk_bf16_f32 v{T1}, v{u}, v{u+1}")
        e(f"v_lshlrev_b32 v{t}, 16, v{T0}")
        e(f"v_and_b32 v{t+1}, s32, v{T0}")
        e(f"v_lshlrev_b32 v{u}, 16, v{T1}")
        e(f"v_and_b32 v{u+1}, s32, v{T1}")
        cadd(k, t, t, u)
        e(f"v_cvt_pk_bf16_f32 v{y[r]}, v{t}, v{t+1}")
        e(f"buffer_store_short v{y[r]}, v{VB}, s[44:47], 0 offen offset:{128*r}")
        e(f"buffer_store_short_d16_hi v{y[r]}, v{VB}, s[44:47], 0 offen offset:{1024+128*r}")
        pool.free(t)
        pool.free(u)
    k.label("K3_end")
    e("s_endpgm")
    return k


HEADER = """; Kernarg layout for this problem (88 bytes, ptrs only, base s[0:1]):
"""


def descriptor(name, vgpr, sgpr=102):
    acc = (vgpr + 3) // 4 * 4
    return f""".amdhsa_kernel {name}
  .amdhsa_next_free_vgpr {vgpr}
  .amdhsa_next_free_sgpr {sgpr}
  .amdhsa_accum_offset {acc}
  .amdhsa_group_segment_fixed_size 0
  .amdhsa_kernarg_size 88
  .amdhsa_user_sgpr_count 2
  .amdhsa_user_sgpr_kernarg_segment_ptr 1
  .amdhsa_system_sgpr_workgroup_id_x 1
  .amdhsa_float_denorm_mode_32 3
.end_amdhsa_kernel
"""


def main(out):
    ks = [(gen_k1(), "gm_k1_kernel", 512, 81920, 208),
          (gen_k2(), "gm_k2_kernel", 513, 65536, 224),
          (gen_k3(), "gm_k3_kernel", 256, 4 * WREG, 120)]
    txt = HEADER
    for _, nm, grid, lds, _v in ks:
        txt += f"; @launch kernel={nm} grid=({grid},1,1) block=(256,1,1) lds={lds}\n"
    txt += '.amdgcn_target "amdgcn-amd-amdhsa--gfx950"\n.text\n'
    for k, nm, _, _, _v in ks:
        txt += f".globl {nm}\n.p2align 8\n.type {nm},@function\n"
        asmlib.lastw_tuple.clear()
        txt += "\n".join(fix_hazards(k.L)) + "\n"
    txt += '.section .rodata,"a"\n'
    for _, nm, _, _, v in ks:
        txt += ".p2align 6\n" + descriptor(nm, v)
    open(out, "w").write(txt)


if __name__ == "__main__":
    main(sys.argv[1] if len(sys.argv) > 1 else f"cdna_kernels/{NAME}.s")
```
